```python
import torch

def _softmax(x, axis=-1):
    return torch.softmax(x, dim=axis)
def _gelu(x):
    return torch.nn.functional.gelu(x, approximate="tanh")
def _silu(x):
    return torch.nn.functional.silu(x)
def _sigmoid(x):
    return torch.sigmoid(x)
def _layernorm(x, axis=-1, eps=1e-5):
    m = x.mean(dim=axis, keepdim=True)
    v = x.var(dim=axis, keepdim=True, unbiased=False)
    return (x - m) / torch.sqrt(v + eps)
def _scatter_add(tgt, idx, src, axis=0):
    return tgt.clone().index_add_(axis, idx, src)
def _segment_sum(src, seg, n):
    out = torch.zeros((n,) + src.shape[1:], dtype=src.dtype)
    return out.index_add_(0, seg, src)
def _pad(x, pw):
    flat = tuple(v for pair in reversed(pw) for v in pair)
    return torch.nn.functional.pad(x, flat)

kernel_name = 'concat_heads__sliding_local_dilated__ssm_conv_h3__prompt'

def setup_inputs():

    _w = (lambda a: (lambda t: t.to(torch.bfloat16) if t.is_floating_point() else t)(torch.as_tensor(a)))
    def _A_setup():
        B, S, D = 1, 2048, 640
        return {
            "x": _w((lambda *s: torch.randn(*s, dtype=torch.bfloat16) * 0.2)(B, S, D)),
            "wqkv": _w((lambda *s: torch.randn(*s, dtype=torch.bfloat16) * 0.2)(D, 3 * D)),
            "wo": _w((lambda *s: torch.randn(*s, dtype=torch.bfloat16) * 0.05)(D, D)),
        }
    _A_in = _A_setup()

    def _B_setup():
        B, S, D = 1, 2048, 640
        ks = 4
        return {
            "q": _w((lambda *s: torch.randn(*s, dtype=torch.bfloat16) * 0.05)(B, S, D)),
            "k": _w((lambda *s: torch.randn(*s, dtype=torch.bfloat16) * 0.8)(B, S, D)),
            "v": _w((lambda *s: torch.randn(*s, dtype=torch.bfloat16) * 0.8)(B, S, D)),
            "shift_k": _w((lambda *s: torch.randn(*s, dtype=torch.bfloat16) * 0.8)(D, ks) * 0.5),
            "ssm_k": _w((lambda *s: torch.randn(*s, dtype=torch.bfloat16) * 3.2)(D, S) * (1.0 / S ** 0.5)),
            "ssm_D": _w((lambda *s: torch.randn(*s, dtype=torch.bfloat16) * 0.8)(D)),
        }
    _B_in = _B_setup()

    return {
        "A_x": _A_in["x"],
        "A_wqkv": _A_in["wqkv"],
        "A_wo": _A_in["wo"],
        "B_q": _B_in["q"],
        "B_k": _B_in["k"],
        "B_v": _B_in["v"],
        "B_shift_k": _B_in["shift_k"],
        "B_ssm_k": _B_in["ssm_k"],
        "B_ssm_D": _B_in["ssm_D"],
    }

def reference(A_x, A_wqkv, A_wo, B_q, B_k, B_v, B_shift_k, B_ssm_k, B_ssm_D):
    def _A_ref(x, wqkv, wo):
        B, S, D = x.shape
        H = 32; Dh = D // H
        W, dil = 8, 2
        qkv = (lambda x, *d: x.permute(*d))((x @ wqkv).reshape(B, S, 3, H, Dh), 2, 0, 3, 1, 4)
        q, k, v = qkv[0], qkv[1], qkv[2]
        scale = Dh ** -0.5
        pos = torch.arange(S)
        off = torch.arange(W) * dil
        idx = pos[:, None] - off[None, :]
        mask = idx >= 0
        idx_c = torch.where(mask, idx, 0).reshape(-1)
        kg = k[:, :, idx_c, :].reshape(B, H, S, W, Dh)
        vg = v[:, :, idx_c, :].reshape(B, H, S, W, Dh)
        logits = torch.einsum("bhsd,bhswd->bhsw", q, kg) * scale
        logits = torch.where(mask[None, None, :, :], logits, -1e9)
        attn = _softmax(logits, axis=-1)
        o = torch.einsum("bhsw,bhswd->bhsd", attn, vg)
        return (lambda x, *d: x.permute(*d))(o, 0, 2, 1, 3).reshape(B, S, D) @ wo

    def _B_ref(q, k, v, shift_k, ssm_k, ssm_D):
        B, S, D = q.shape
        ks = shift_k.shape[-1]
        k_pad = _pad(k, ((0, 0), (ks - 1, 0), (0, 0)))
        k_shift = torch.zeros_like(k)
        for t in range(ks):
            k_shift = k_shift + k_pad[:, t:t + S, :] * shift_k[:, ks - 1 - t][None, None, :]
        kv = k_shift * v
        L = 2 * S
        kv_pad = _pad(kv, ((0, 0), (0, S), (0, 0)))
        kf_pad = _pad(ssm_k, ((0, 0), (0, S)))
        kv_f = (lambda x, axes=(-2,-1): torch.fft.rfft2(x.float(), dim=axes))(kv_pad[:, None, :, :], axes=(1, 2))
        kf_f = (lambda x, axes=(-2,-1): torch.fft.rfft2(x.float(), dim=axes))(kf_pad[:, None, :], axes=(1, 2))
        kf_f = (lambda x, *d: x.permute(*d))(kf_f, 1, 2, 0)
        y_f = kv_f * kf_f[None, :, :, :]
        y = (lambda x, s, axes=(-2,-1): torch.fft.irfft2(x, s=s, dim=axes).to(torch.bfloat16))(y_f, (1, L), axes=(1, 2))[:, 0, :S, :]
        y = y + kv * ssm_D[None, None, :]
        return q * y

    a = _A_ref(A_x, A_wqkv, A_wo)
    b = _B_ref(B_q, B_k, B_v, B_shift_k, B_ssm_k, B_ssm_D)
    return torch.concatenate([a, b], axis=-1)
```

```python
import re

class Asm:
    def __init__(self):
        self.lines = []
    def I(self, s):
        for ln in s.strip().split("\n"):
            ln = ln.strip()
            if ln: self.lines.append("    " + ln)
    def L(self, name): self.lines.append(name + ":")
    def C(self, s): self.lines.append("    ; " + s)
    def raw(self, s): self.lines.append(s)
    def nop(self, n):
        while n > 0:
            k = min(n, 16); self.I("s_nop %d" % (k-1)); n -= k
    def text(self): return "\n".join(self.lines) + "\n"

def v(i, n=1): return "v%d" % i if n == 1 else "v[%d:%d]" % (i, i+n-1)
def s(i, n=1): return "s%d" % i if n == 1 else "s[%d:%d]" % (i, i+n-1)

_reg = re.compile(r'\b([vsa])(\d+)\b|\b([vsa])\[(\d+):(\d+)\]')
def regs_of(op):
    out = set()
    for m in _reg.finditer(op):
        if m.group(1): out.add((m.group(1), int(m.group(2))))
        else:
            for i in range(int(m.group(4)), int(m.group(5))+1): out.add((m.group(3), i))
    if re.search(r'\bvcc\b', op): out |= {('s', 'vcc')}
    if re.search(r'\bexec\b', op): out |= {('s', 'exec')}
    if re.search(r'\bm0\b', op): out |= {('s', 'm0')}
    return out

TRANS = ('v_exp_f32', 'v_log_f32', 'v_rcp_f32', 'v_rsq_f32', 'v_sqrt_f32', 'v_sin_f32', 'v_cos_f32', 'v_rcp_iflag_f32')
def parse(line):
    t = line.split(';')[0].strip()
    if not t or t.endswith(':') or t.startswith('.'): return None
    parts = t.split(None, 1)
    op = parts[0]; rest = parts[1] if len(parts) > 1 else ''
    ops = [x.strip() for x in re.split(r',(?![^\[]*\])', rest)] if rest else []
    base = re.sub(r'_(e32|e64|dpp|sdwa)$', '', op)
    d = dict(op=base, text=t, dst=set(), src=set(), kind='other', ops=ops)
    if base.startswith('v_mfma'):
        d['kind'] = 'mfma'; d['dst'] = regs_of(ops[0]); d['A'] = regs_of(ops[1]); d['B'] = regs_of(ops[2]); d['Cc'] = regs_of(ops[3])
        d['src'] = d['A'] | d['B'] | d['Cc']
        d['passes'] = 8 if '32x32' in base else 4
    elif base.startswith('v_cmp'):
        d['kind'] = 'valu'; d['dst'] = regs_of(ops[0]);
        for o in ops[1:]: d['src'] |= regs_of(o)
        if base.startswith('v_cmpx'): d['dst'] |= {('s','exec')}
    elif base.startswith('v_permlane') and 'swap' in base:
        d['kind'] = 'valu'; d['perm'] = True; d['dst'] = regs_of(ops[0]) | regs_of(ops[1]); d['src'] = set(d['dst'])
    elif base.startswith('v_readfirstlane') or base.startswith('v_readlane'):
        d['kind'] = 'valu'; d['rdlane'] = True; d['dst'] = regs_of(ops[0])
        for o in ops[1:]: d['src'] |= regs_of(o)
    elif base.startswith('v_'):
        d['kind'] = 'valu'; d['dst'] = regs_of(ops[0])
        rest_ops = ops[1:]
        if base in ('v_add_co_u32','v_addc_co_u32','v_sub_co_u32','v_subb_co_u32','v_mad_u64_u32','v_div_scale_f32'):
            d['dst'] |= regs_of(ops[1]); rest_ops = ops[2:]
        for o in rest_ops: d['src'] |= regs_of(o)
        if base in ('v_fmac_f32','v_fmac_f32','v_dot2c_f32_bf16','v_pk_fmac_f16', 'v_mac_f32', 'v_writelane_b32'): d['src'] |= d['dst']
        if base == 'v_cndmask_b32' and len(ops) == 3: d['src'] |= {('s','vcc')}
        if 'dpp' in op or 'row_' in t or 'quad_perm' in t or 'wave_' in t: d['dpp'] = True
        if base in TRANS: d['trans'] = True
    elif base.startswith('ds_'):
        d['kind'] = 'ds'
        if 'read' in base or 'bpermute' in base or 'permute' in base or 'swizzle' in base:
            d['dst'] = regs_of(ops[0])
            for o in ops[1:]: d['src'] |= regs_of(o)
        else:
            for o in ops: d['src'] |= regs_of(o)
    elif base.startswith('buffer_') or base.startswith('global_'):
        d['kind'] = 'vmem'
        isload = 'load' in base and ' lds' not in t and '_lds_' not in base
        if isload:
            d['dst'] = regs_of(ops[0])
            for o in ops[1:]: d['src'] |= regs_of(o)
        else:
            for o in ops: d['src'] |= regs_of(o)
            if 'lds' in t: d['src'] |= {('s','m0')}; d['ldsdma'] = True
            if 'store' in base and ('x3' in base or 'x4' in base):
                d['wide_store'] = regs_of(ops[0] if base.startswith('buffer') else ops[1])
            if 'atomic' in base and re.search(r'\bsc0\b', t): d['dst'] = regs_of(ops[0])
    elif base.startswith('s_'):
        d['kind'] = 'salu'
        if base in ('s_nop',): d['nop'] = int(ops[0], 0) + 1
        elif base in ('s_waitcnt','s_barrier','s_endpgm','s_setprio','s_sleep'): pass
        elif base.startswith('s_cmp') or base.startswith('s_cbranch') or base == 's_branch' or base.startswith('s_bitcmp'):
            for o in ops: d['src'] |= regs_of(o)
        else:
            d['dst'] = regs_of(ops[0])
            for o in ops[1:]: d['src'] |= regs_of(o)
            if 'saveexec' in base: d['dst'] |= {('s','exec')}
    return d

def check_hazards(text, verbose=True):
    ins = []
    for n, ln in enumerate(text.split("\n")):
        p = parse(ln)
        if p: p['line'] = n+1; ins.append(p)
        elif ln.strip().endswith(':') and ln.strip().endswith('_kernel:'): ins.append(dict(op='BARRIER', kind='reset', dst=set(), src=set(), line=n+1, text=ln))
    probs = []
    W = 24
    for i, c in enumerate(ins):
        if c['kind'] == 'reset': continue
        dist = 0
        for j in range(i-1, max(-1, i-W), -1):
            p = ins[j]
            if p['kind'] == 'reset': break
            if p['op'] in ('s_branch', 's_endpgm'): break
            need = 0; why = ''
            vd = {r for r in p['dst'] if r[0] in 'va'}
            sd = {r for r in p['dst'] if r[0] == 's'}
            def req(n, w):
                nonlocal need, why
                if n > need: need, why = n, w
            if p['kind'] == 'valu':
                if c['kind'] == 'mfma' and vd & c['src']: req(2, 'VALU->MFMA')
                if c.get('perm') and vd & c['src']: req(2, 'VALU->permlane')
                if c.get('rdlane') and vd & c['src']: req(1, 'VALU->readlane')
                if c.get('dpp') and vd & c['src']: req(2, 'VALU->DPP')
                if p.get('trans') and c['kind'] in ('valu',) and vd & c['src'] and not c.get('trans'): req(1, 'trans->VALU')
                if p.get('trans') and c['kind'] in ('valu',) and vd & c['src'] and c.get('trans'): req(1, 'trans->trans(cons)')
                if sd:
                    if c['kind'] == 'valu' and (sd - {('s','exec')}) & c['src']: req(2, 'VALU sgpr->VALU const')
                    if c['kind'] == 'vmem' and sd & c['src']: req(5, 'VALU sgpr->VMEM')
                    pass
                    if ('s','exec') in sd and c['kind'] == 'mfma': req(4, 'VALU exec->MFMA')
                    if ('s','exec') in sd and c.get('dpp'): req(5, 'VALU exec->DPP')
            if p['kind'] == 'mfma':
                ps = p['passes']
                rw = {4: 8, 8: 12}[ps]; ov = {4: 6, 8: 10}[ps]; war = {4: 3, 8: 7}[ps]
                if c['kind'] == 'mfma':
                    if vd & (c['A'] | c['B']): req(rw, 'MFMA D->MFMA A/B')
                    if vd & c['Cc'] and (vd != c['Cc'] or ps != c['passes']): req(ov, 'MFMA D->MFMA C overlap')
                    if vd & c['dst'] and vd != c['Cc'] : req(rw, 'MFMA D->MFMA D WAW')
                else:
                    if vd & (c['src'] | c['dst']): req(rw, 'MFMA D->%s' % c['kind'])
                    if c['kind'] == 'valu' and p['Cc'] & c['dst']: req(war, 'MFMA C WAR VALU')
            if p.get('wide_store') and c['kind'] == 'valu' and p['wide_store'] & c['dst']: req(2, 'wide store WAR')
            if p['kind'] == 'salu' and ('s','m0') in sd and c.get('ldsdma'): req(1, 'm0->DMA')
            if need and dist < need:
                probs.append((c['line'], c['text'], p['line'], p['text'], why, need, dist))
            dist += p.get('nop', 1)
            if dist >= 13: break
    if verbose:
        for pr in probs: print("HAZARD line %d [%s] after line %d [%s]: %s need %d have %d" % pr)
    return probs
```

```python
from asmlib import *
NAME = "concat_heads__sliding_local_dilated__ssm_conv_h3__prompt"
KA = dict(x=0, wqkv=8, wo=16, q=24, k=32, v=40, shift=48, h=56, D=64, out=72, dbg=80, ws=88)
WS_O  = 0
WS_UT = 0x280000
WS_QB = 0x500000
SZ = 2621440

def header(launches):
    t = ""
    for (k, g, b, lds) in launches:
        t += "; @launch kernel=%s grid=(%d,1,1) block=(%d,1,1) lds=%d\n" % (k, g, b, lds)
    t += '.amdgcn_target "amdgcn-amd-amdhsa--gfx950"\n.text\n'
    return t

def kernel_begin(a, name):
    a.raw(".globl %s" % name); a.raw(".p2align 8"); a.raw(".type %s,@function" % name); a.raw(name + ":")

def descriptor(name, vgpr=256, sgpr=96):
    return """.p2align 6
.amdhsa_kernel %s
  .amdhsa_next_free_vgpr %d
  .amdhsa_next_free_sgpr %d
  .amdhsa_accum_offset %d
  .amdhsa_group_segment_fixed_size 0
  .amdhsa_kernarg_size 96
  .amdhsa_user_sgpr_count 2
  .amdhsa_user_sgpr_kernarg_segment_ptr 1
  .amdhsa_system_sgpr_workgroup_id_x 1
  .amdhsa_float_denorm_mode_32 3
.end_amdhsa_kernel
""" % (name, vgpr, sgpr, (vgpr + 3)//4*4)

def srd(a, sreg, ptr_lo, nbytes, add=0):
    if add:
        a.I("s_add_u32 s%d, s%d, 0x%x" % (sreg, ptr_lo, add))
        a.I("s_addc_u32 s%d, s%d, 0" % (sreg+1, ptr_lo+1))
    else:
        a.I("s_mov_b32 s%d, s%d" % (sreg, ptr_lo))
        a.I("s_mov_b32 s%d, s%d" % (sreg+1, ptr_lo+1))
    a.I("s_and_b32 s%d, s%d, 0xffff" % (sreg+1, sreg+1))
    a.I("s_mov_b32 s%d, 0x%x" % (sreg+2, nbytes))
    a.I("s_mov_b32 s%d, 0x20000" % (sreg+3))
```

```python
import os, struct
from common import *

PROF  = int(os.environ.get("PROF", "0"))
SPLIT = int(os.environ.get("SPLIT", "0"))
SC1 = " sc1"

WS_O    = 0x000000
WS_UT   = 0x280000
WS_FLAG = 0x500000
WS_SEED = 0x510000
WS_PROF = 0x800000

P_X, P_W, P_WO, P_Q, P_K, P_V, P_SH, P_H, P_D, P_OUT, P_DBG, P_WS = 4, 6, 8, 10, 12, 14, 16, 18, 20, 22, 24, 26
S_WAVE, S_IDX, S_RB, S_HG = 28, 29, 30, 31
R0, R1, R2, R3, R4 = 32, 36, 40, 44, 48
T0, T1, T2, T3, T4, T5 = 52, 53, 54, 55, 56, 57
M0A, M0B = 58, 60
S_NONCE = 62; S_RB2 = 63; S_CB = 64
S_M = 65
S_SLOT, S_XOFF, S_WOFF, S_ST, S_C = 76, 77, 78, 79, 3
STAMP0 = 80
PFD = int(os.environ.get("PFD", "4"))
S_PFO, S_PFS = 74+3, 74+4
S_PFO, S_PFS = 66, 67
V_PF = 15; V_PFD = 0

def stamp(a, i):
    if PROF: a.I("s_memtime s[%d:%d]" % (STAMP0+2*i, STAMP0+2*i+1))
def rstamp(a, i):
    if PROF: a.I("s_memrealtime s[%d:%d]" % (STAMP0+2*i, STAMP0+2*i+1))
def stamp_flush(a, n, phase):
    if not PROF: return
    a.I("s_waitcnt lgkmcnt(0)")
    a.I("s_mov_b64 exec, 1")
    a.I("s_lshl_b32 s%d, s2, 3" % T0); a.I("s_add_u32 s%d, s%d, s%d" % (T0, T0, S_WAVE)); a.I("s_lshl_b32 s%d, s%d, 6" % (T0, T0))
    srd(a, R4, P_WS, 0x40000, WS_PROF + phase*0x40000)
    a.I("v_mov_b32 v1, s%d" % T0)
    for i in range(n):
        a.I("v_mov_b32 v2, s%d" % (STAMP0+2*i))
        a.I("buffer_store_dword v2, v1, s[%d:%d], 0 offen offset:%d" % (R4, R4+3, 4*i))
        a.I("s_nop 1")
    a.I("s_mov_b64 exec, -1")

def vstamp(a, idx):
    if PROF != 2: return
    a.I("s_memtime s[98:99]")
    a.I("s_waitcnt lgkmcnt(0)")
    if str(idx).startswith("s"):
        a.I("s_mov_b32 m0, %s" % idx)
        a.I("s_nop 3")
        a.I("v_writelane_b32 v63, s98, m0")
    else: a.I("v_writelane_b32 v63, s98, %s" % idx)
def vstamp_flush(a):
    if PROF != 2: return
    a.I("s_lshl_b32 s%d, s2, 3" % T0); a.I("s_add_u32 s%d, s%d, s%d" % (T0, T0, S_WAVE)); a.I("s_lshl_b32 s%d, s%d, 8" % (T0, T0))
    srd(a, R4, P_WS, 0x80000, WS_PROF + 0x100000)
    a.I("v_lshlrev_b32 v1, 2, v10"); a.I("v_add_u32 v1, s%d, v1" % T0)
    a.I("buffer_store_dword v63, v1, s[%d:%d], 0 offen" % (R4, R4+3))

def prologue(a, tag):
    a.I("s_cmp_ge_u32 s2, 256")
    a.I("s_cbranch_scc1 END_%s" % tag)
    rstamp(a, 0)
    stamp(a, 1)
    a.I("s_load_dwordx16 s[4:19], s[0:1], 0")
    a.I("s_load_dwordx8 s[20:27], s[0:1], 64")
    a.I("v_lshrrev_b32 v11, 6, v0")
    a.I("v_and_b32 v10, 63, v0")
    a.I("s_and_b32 s%d, s2, 7" % T0)
    a.I("s_lshr_b32 s%d, s2, 3" % T1)
    a.I("v_readfirstlane_b32 s%d, v11" % S_WAVE)
    a.I("s_cmp_ge_u32 s%d, 22" % T1)
    a.I("s_cbranch_scc1 ROLE_B_%s" % tag)
    a.I("s_mul_i32 s%d, s%d, 22" % (T0, T0))
    a.I("s_add_u32 s%d, s%d, s%d" % (S_IDX, T0, T1))
    a.I("s_cmp_ge_u32 s%d, 88" % S_IDX)
    a.I("s_cselect_b32 s%d, 88, 0" % T2)
    a.I("s_cselect_b32 s%d, 8, 0" % T3)
    a.I("s_sub_u32 s%d, s%d, s%d" % (T2, S_IDX, T2))
    a.I("s_lshr_b32 s%d, s%d, 3" % (S_RB, T2))
    a.I("s_and_b32 s%d, s%d, 7" % (T2, T2))
    a.I("s_add_u32 s%d, s%d, s%d" % (S_HG, T2, T3))
    a.I("s_mul_i32 s%d, s%d, 6554" % (T2, S_IDX))
    a.I("s_lshr_b32 s%d, s%d, 16" % (S_RB2, T2))
    a.I("s_mul_i32 s%d, s%d, 10" % (T2, S_RB2))
    a.I("s_sub_u32 s%d, s%d, s%d" % (S_CB, S_IDX, T2))

NT = 3
XROWS = 16*(4*NT+1)
XB = XROWS*128
WB = 64*240
SCR = XB + WB
SLOT = XB + WB + 1024
NSLOT = 3; NST = 10
TILES = ['Qm0','Qm1','Km0','Km1','E1','Vm0','Vm1','E2']
ORI   = dict(Qm0=1,Qm1=1,Km0=1,Km1=1,E1=1,Vm0=2,Vm1=2,E2=2)
COL   = dict(Qm0=0,Qm1=40,Km0=80,Km1=120,Vm0=160,Vm1=200)
V_X0, V_X1, V_H0, V_H1, V_W, V_E1, V_E2, V_HK, V_HV, V_LANE = 1,2,3,4,5,6,7,8,9,10
ACC = 16; SETA = 120; SETB = 176
BP0, BP, BC, ONES = 232, 236, 240, 244
def acc(t, name): return ACC + (t*8 + TILES.index(name))*4
ACC_HK = ACC + NT*32; ACC_HV = ACC_HK + 4
def wfrag(S, name): return S + TILES.index(name)*4
def hkf(S): return S + 32
def hvf(S): return S + 36
def xfrag(S, i): return S + 40 + 4*i
L_WO = 0
L_EX = 81920
L_OB = L_EX + 5*3072

def a_loader(a, tag):
    NX, NW = 7, 4
    VX, VW = 16, 24
    a.C("---- A loader (wave a = s_wave-4)")
    a.I("s_sub_u32 s%d, s%d, 4" % (T5, S_WAVE))
    a.I("v_lshrrev_b32 v1, 3, v10")
    a.I("v_and_b32 v2, 7, v10")
    a.I("v_xor_b32 v2, v2, v1")
    a.I("v_lshlrev_b32 v2, 4, v2")
    a.I("s_mul_i32 s%d, s%d, 192" % (T0, S_RB))
    a.I("s_lshl_b32 s%d, s%d, 3" % (T1, T5))
    a.I("s_add_u32 s%d, s%d, s%d" % (T0, T0, T1))
    a.I("s_sub_i32 s%d, s%d, 16" % (T0, T0))
    a.I("v_add_u32 v1, s%d, v1" % T0)
    a.I("s_movk_i32 s%d, 1280" % T1)
    for j in range(NX):
        a.I("v_add_u32 v3, %d, v1" % (32*j))
        a.I("v_max_i32 v3, 0, v3")
        a.I("v_mul_lo_u32 v3, v3, s%d" % T1)
        a.I("v_add_u32 v%d, v3, v2" % (VX+j))
    a.I("s_lshl_b32 s%d, s%d, 10" % (T0, T5))
    for j in range(NX):
        a.I("s_add_u32 s%d, s%d, %d" % (S_M+j, T0, 4096*j))
    a.I("s_cmp_ge_u32 s%d, 2" % T5)
    a.I("s_cselect_b32 s%d, %d, s%d" % (S_M+NX-1, SCR, S_M+NX-1))
    a.I("s_cselect_b32 s%d, 0x7ffffff0, 0" % T2)
    a.I("v_or_b32 v%d, s%d, v%d" % (VX+NX-1, T2, VX+NX-1))
    a.I("s_waitcnt lgkmcnt(0)")
    srd(a, R0, P_X, SZ)
    srd(a, R1, P_W, 640*3840)
    a.I("s_mov_b32 s%d, 0" % S_SLOT); a.I("s_mov_b32 s%d, 0" % S_XOFF); a.I("s_mov_b32 s%d, 0" % S_WOFF)
    def issue_x():
        for j in range(NX):
            a.I("s_add_u32 m0, s%d, s%d" % (S_SLOT, S_M+j))
            a.I("s_nop 0")
            a.I("buffer_load_dwordx4 v%d, s[%d:%d], s%d offen lds" % (VX+j, R0, R0+3, S_XOFF))
    def issue_w():
        for j in range(NW):
            a.I("s_add_u32 m0, s%d, s%d" % (S_SLOT, S_M+NX+j))
            a.I("s_nop 0")
            a.I("buffer_load_dwordx4 v%d, s[%d:%d], s%d offen lds" % (VW+j, R1, R1+3, S_WOFF))
    def advance():
        a.I("s_add_u32 s%d, s%d, 128" % (S_XOFF, S_XOFF))
        a.I("s_add_u32 s%d, s%d, %d" % (S_WOFF, S_WOFF, 64*3840))
        a.I("s_add_u32 s%d, s%d, %d" % (S_SLOT, S_SLOT, SLOT))
        a.I("s_cmp_eq_u32 s%d, %d" % (S_SLOT, NSLOT*SLOT))
        a.I("s_cselect_b32 s%d, 0, s%d" % (S_SLOT, S_SLOT))
    stamp(a, 2)
    if PROF == 2: a.I("v_mov_b32 v63, -1")
    vstamp(a, "0")
    issue_x()
    a.I("s_mul_i32 s%d, s%d, 80" % (T0, S_HG))
    a.I("s_movk_i32 s%d, 4370" % T1)
    a.I("s_movk_i32 s%d, 3840" % T2)
    a.I("s_lshl_b32 s%d, s%d, 6" % (T3, T5))
    for j in range(NW):
        a.I("v_add_u32 v1, s%d, v10" % T3)
        if j: a.I("v_add_u32 v1, %d, v1" % (256*j))
        a.I("v_mul_lo_u32 v2, v1, s%d" % T1)
        a.I("v_lshrrev_b32 v2, 16, v2")
        a.I("v_mul_u32_u24 v3, 15, v2")
        a.I("v_sub_u32 v1, v1, v3")
        a.I("v_and_b32 v3, 0xfffffff8, v2")
        a.I("v_and_b32 v4, 1, v2")
        a.I("v_lshl_add_u32 v3, v4, 2, v3")
        a.I("v_bfe_u32 v4, v2, 1, 2")
        a.I("v_add_u32 v3, v3, v4")
        a.I("v_mul_lo_u32 v3, v3, s%d" % T2)
        a.I("v_mul_u32_u24 v4, 52, v1")
        a.I("v_lshrrev_b32 v4, 8, v4")
        a.I("v_mul_u32_u24 v5, 5, v4")
        a.I("v_sub_u32 v1, v1, v5")
        a.I("v_mul_u32_u24 v4, 1280, v4")
        a.I("v_add_u32 v3, v3, v4")
        a.I("v_lshl_add_u32 v3, v1, 4, v3")
        a.I("v_add_u32 v%d, s%d, v3" % (VW+j, T0))
    a.I("s_lshl_b32 s%d, s%d, 10" % (T0, T5))
    for j in range(NW):
        a.I("s_add_u32 s%d, s%d, %d" % (S_M+NX+j, T0, XB + 4096*j))
    a.I("s_cmp_eq_u32 s%d, 3" % T5)
    a.I("s_cselect_b32 s%d, %d, s%d" % (S_M+NX+NW-1, SCR, S_M+NX+NW-1))
    a.I("s_cselect_b32 s%d, 0x7ffffff0, 0" % T2)
    a.I("v_or_b32 v%d, s%d, v%d" % (VW+NW-1, T2, VW+NW-1))
    issue_w(); advance()
    issue_x(); issue_w(); advance()
    stamp(a, 3)
    a.I("s_waitcnt vmcnt(11)")
    stamp(a, 4)
    vstamp(a, "1")
    a.I("s_barrier")
    vstamp(a, "2")
    issue_x(); issue_w(); advance()
    a.I("s_mov_b32 s%d, 0" % S_ST)
    a.L("AL_LOOP_%s" % tag)
    if PROF == 2:
        a.I("s_lshl_b32 s97, s%d, 1" % S_ST); a.I("s_add_u32 s96, s97, 3"); a.I("s_add_u32 s97, s97, 4"); a.I("s_add_u32 s95, s96, 20")
        vstamp(a, "s95")
    a.I("s_waitcnt vmcnt(11)")
    vstamp(a, "s96")
    a.I("s_barrier")
    vstamp(a, "s97")
    issue_x(); issue_w(); advance()
    a.I("s_add_u32 s%d, s%d, 1" % (S_ST, S_ST))
    a.I("s_cmp_lt_u32 s%d, 7" % S_ST)
    a.I("s_cbranch_scc1 AL_LOOP_%s" % tag)
    a.I("s_waitcnt vmcnt(11)")
    vstamp(a, "17")
    a.I("s_barrier")
    vstamp(a, "18")
    a.I("s_waitcnt vmcnt(0)")
    vstamp(a, "19")
    a.I("s_barrier")
    vstamp(a, "20")
    a.I("s_barrier")
    vstamp(a, "21")
    vstamp_flush(a)
    stamp(a, 5)

def a1_reads(S, ks):
    r = []
    vx = V_X0 if ks == 0 else V_X1
    vh = V_H0 if ks == 0 else V_H1
    for t in range(NT): r.append("ds_read_b128 %s, v%d offset:%d" % (v(xfrag(S,t),4), vx, t*2048))
    for name in TILES:
        for hb in range(2):
            if name == 'E1': base, off = V_E1, 0
            elif name == 'E2': base, off = V_E2, 0
            else: base, off = V_W, COL[name]
            r.append("ds_read_b64_tr_b16 %s, v%d offset:%d" % (v(wfrag(S,name)+2*hb,2), base, off + hb*240 + ks*7680))
    r.append("ds_read_b128 %s, v%d offset:0" % (v(xfrag(S,3),4), vh))
    for hb in range(2): r.append("ds_read_b64_tr_b16 %s, v%d offset:%d" % (v(hkf(S)+2*hb,2), V_HK, hb*240 + ks*7680))
    for hb in range(2): r.append("ds_read_b64_tr_b16 %s, v%d offset:%d" % (v(hvf(S)+2*hb,2), V_HV, hb*240 + ks*7680))
    return r

def a1_mfmas(S, first=False):
    m = []
    def mm(d, wf, xi, ori):
        c = "0" if first else v(d,4)
        if ori == 1: return "v_mfma_f32_16x16x32_bf16 %s, %s, %s, %s" % (v(d,4), v(wf,4), v(xfrag(S,xi),4), c)
        return "v_mfma_f32_16x16x32_bf16 %s, %s, %s, %s" % (v(d,4), v(xfrag(S,xi),4), v(wf,4), c)
    for name in TILES:
        for t in range(NT): m.append(mm(acc(t,name), wfrag(S,name), t, ORI[name]))
    m.append(mm(ACC_HK, hkf(S), 3, 1))
    m.append(mm(ACC_HV, hvf(S), 3, 2))
    return m

def interleave(a, ms, others):
    n = len(ms); k = len(others); idx = 0
    for i, m in enumerate(ms):
        a.I(m)
        upto = (k*(i+1) + n - 1)//n
        while idx < min(upto, k): a.I(others[idx]); idx += 1
    while idx < k: a.I(others[idx]); idx += 1

def pf(a):
    a.I("buffer_load_dword v%d, v%d, s[%d:%d], s%d offen" % (V_PFD, V_PF, R3, R3+3, S_PFO))
    a.I("s_add_u32 s%d, s%d, s%d" % (S_PFO, S_PFO, S_PFS))

def a_compute(a, tag):
    a.C("---- A compute waves 0..3")
    w = S_WAVE
    a.I("v_and_b32 v11, 15, v10")
    a.I("v_lshrrev_b32 v12, 4, v10")
    a.I("v_and_b32 v13, 7, v10")
    a.I("v_xor_b32 v13, v12, v13")
    a.I("v_lshlrev_b32 v13, 4, v13")
    a.I("v_lshl_add_u32 v%d, v11, 7, v13" % V_H0)
    a.I("v_xor_b32 v%d, 64, v%d" % (V_H1, V_H0))
    a.I("s_mul_i32 s%d, s%d, %d" % (T0, w, NT*2048))
    a.I("s_add_u32 s%d, s%d, 2048" % (T0, T0))
    a.I("v_add_u32 v%d, s%d, v%d" % (V_X0, T0, V_H0))
    a.I("v_add_u32 v%d, s%d, v%d" % (V_X1, T0, V_H1))
    a.I("v_bfe_u32 v13, v10, 2, 2")
    a.I("v_lshlrev_b32 v14, 3, v12")
    a.I("v_lshl_add_u32 v14, v13, 1, v14")
    a.I("v_mul_u32_u24 v14, 240, v14")
    a.I("v_add_u32 v14, %d, v14" % XB)
    a.I("v_and_b32 v13, 3, v10")
    a.I("v_lshl_add_u32 v%d, v13, 3, v14" % V_W)
    a.I("v_mul_u32_u24 v15, 40, v13")
    a.I("v_add3_u32 v%d, v15, v14, 32" % V_E1)
    a.I("v_and_b32 v13, 1, v13")
    a.I("v_mul_u32_u24 v15, 40, v13")
    a.I("v_add_u32 v15, 192, v15")
    a.I("v_add_u32 v%d, v15, v14" % V_E2)
    a.I("s_mul_i32 s%d, s%d, 40" % (T0, w))
    a.I("s_add_u32 s%d, s%d, 80" % (T1, T0))
    a.I("s_add_u32 s%d, s%d, 160" % (T2, T0))
    a.I("v_add_u32 v%d, s%d, v%d" % (V_HK, T1, V_W))
    a.I("v_add_u32 v%d, s%d, v%d" % (V_HV, T2, V_W))
    a.I("s_cmp_ge_u32 s%d, 2" % w)
    a.I("s_cbranch_scc0 AC_H_%s" % tag)
    a.I("v_mov_b32 v%d, v%d" % (V_HK, V_E1))
    a.I("v_mov_b32 v%d, v%d" % (V_HV, V_E2))
    a.L("AC_H_%s" % tag)
    a.I("s_mov_b32 s%d, 0xf149f2ca" % T0)
    a.I("v_lshlrev_b32 v13, 2, v12")
    a.I("v_sub_u32 v13, v11, v13")
    a.I("v_mov_b32 v15, s%d" % T0)
    for r in range(4):
        a.I("v_subrev_u32 v14, %d, v13" % r)
        a.I("v_and_b32 v11, 1, v14")
        a.I("v_cmp_eq_u32 vcc, 0, v11")
        a.I("v_cmp_le_i32 s[%d:%d], 0, v14" % (M0A, M0A+1))
        a.I("v_cmp_ge_i32 s[%d:%d], -2, v14" % (M0B, M0B+1))
        a.I("s_and_b64 s[%d:%d], s[%d:%d], vcc" % (M0A, M0A+1, M0A, M0A+1))
        a.I("s_and_b64 s[%d:%d], s[%d:%d], vcc" % (M0B, M0B+1, M0B, M0B+1))
        a.I("v_mov_b32 v%d, 0x3f803f80" % (ONES+r))
        a.I("v_cndmask_b32 v%d, v15, 0, s[%d:%d]" % (BC+r, M0A, M0A+1))
        a.I("v_cndmask_b32 v%d, v15, 0, s[%d:%d]" % (BP+r, M0B, M0B+1))
        a.I("v_cndmask_b32 v%d, v15, 0, s[%d:%d]" % (BP0+r, M0B, M0B+1))
    a.I("s_or_b32 s%d, s%d, s%d" % (T1, S_RB, w))
    a.I("s_cmp_eq_u32 s%d, 0" % T1)
    a.I("s_cbranch_scc0 AC_B_%s" % tag)
    for r in range(4): a.I("v_mov_b32 v%d, v15" % (BP0+r))
    a.L("AC_B_%s" % tag)
    if PFD:
        a.I("s_waitcnt lgkmcnt(0)")
        a.I("s_cmp_eq_u32 s%d, 1" % w)
        a.I("s_cbranch_scc1 PF_W_%s" % tag)
        srd(a, R3, P_X, SZ)
        a.I("s_and_b32 s%d, s2, 3" % T0); a.I("s_mul_i32 s%d, s%d, 22" % (T0, T0))
        a.I("s_add_u32 s%d, s%d, 21" % (T1, T0)); a.I("s_lshr_b32 s%d, s%d, 3" % (T0, T0)); a.I("s_lshr_b32 s%d, s%d, 3" % (T1, T1))
        a.I("s_add_u32 s%d, s%d, 1" % (T1, T1)); a.I("s_mul_i32 s%d, s%d, %d" % (T1, T1, 192*1280))
        a.I("s_mul_i32 s%d, s%d, 192" % (T0, T0)); a.I("s_sub_i32 s%d, s%d, 16" % (T0, T0))
        a.I("s_max_i32 s%d, s%d, 0" % (T0, T0))
        a.I("s_lshr_b32 s%d, s2, 3" % T2); a.I("s_mul_i32 s%d, s%d, 36" % (T2, T2)); a.I("s_add_i32 s%d, s%d, s%d" % (T0, T0, T2))
        a.I("s_mul_i32 s%d, s%d, 1280" % (T0, T0))
        a.I("s_sub_u32 s%d, s%d, 1" % (T2, w)); a.I("s_max_i32 s%d, s%d, 0" % (T2, T2)); a.I("s_lshl_b32 s%d, s%d, 14" % (T2, T2))
        a.I("s_add_u32 s%d, s%d, s%d" % (T2, T0, T2))
        a.I("v_lshlrev_b32 v11, 7, v10"); a.I("v_add_u32 v%d, s%d, v11" % (V_PF, T2))
        a.I("s_add_u32 s%d, s%d, %d" % (T0, T0, 36*1280)); a.I("s_min_u32 s%d, s%d, s%d" % (R3+2, T0, T1)); a.I("s_min_u32 s%d, s%d, %d" % (R3+2, R3+2, SZ))
        a.I("s_mov_b32 s%d, 0" % S_PFO); a.I("s_mov_b32 s%d, 8192" % S_PFS)
        pf(a); pf(a)
        a.I("s_mov_b32 s%d, 0" % (R3+2))
        a.I("s_branch PF_D_%s" % tag)
        a.L("PF_W_%s" % tag)
        srd(a, R3, P_W, 640*3840)
        a.I("s_lshr_b32 s%d, s2, 3" % T0); a.I("s_mul_i32 s%d, s%d, 44" % (T0, T0))
        a.I("v_add_u32 v11, s%d, v10" % T0)
        a.I("v_mul_u32_u24 v12, 4370, v11"); a.I("v_lshrrev_b32 v12, 16, v12")
        a.I("v_mul_u32_u24 v13, 15, v12"); a.I("v_sub_u32 v13, v11, v13")
        a.I("v_mul_u32_u24 v14, 52, v13"); a.I("v_lshrrev_b32 v14, 8, v14")
        a.I("v_mul_u32_u24 v11, 5, v14"); a.I("v_sub_u32 v13, v13, v11")
        a.I("v_mul_u32_u24 v12, 3840, v12"); a.I("v_mul_u32_u24 v14, 1280, v14")
        a.I("v_add_u32 v12, v12, v14"); a.I("v_lshl_add_u32 v12, v13, 7, v12")
        a.I("s_lshr_b32 s%d, s%d, 3" % (T0, S_HG)); a.I("s_mul_i32 s%d, s%d, 640" % (T0, T0))
        a.I("v_add_u32 v%d, s%d, v12" % (V_PF, T0))
        a.I("v_cmp_gt_u32 vcc, 44, v10")
        a.I("s_mov_b32 s%d, %d" % (S_PFS, 64*3840))
        a.I("v_mov_b32 v11, 0x7ffffff0")
        a.I("s_mov_b32 s%d, 0" % S_PFO)
        a.I("v_cndmask_b32 v%d, v11, v%d, vcc" % (V_PF, V_PF))
        for st in range(PFD): pf(a)
        a.L("PF_D_%s" % tag)
    a.I("s_mov_b32 s%d, %d" % (T0, SLOT))
    a.I("s_mov_b32 s%d, %d" % (T1, (-(NSLOT-1)*SLOT) & 0xffffffff))
    stamp(a, 2)
    a.I("s_barrier")
    stamp(a, 3)
    for r in a1_reads(SETA, 0): a.I(r)
    a.I("s_waitcnt lgkmcnt(0)")
    bases = (V_X0, V_X1, V_H0, V_H1, V_W, V_E1, V_E2, V_HK, V_HV)
    for st in range(NST):
        dl = T1 if (st+1) % NSLOT == 0 else T0
        upd = ["v_add_u32 v%d, s%d, v%d" % (r, dl, r) for r in bases] if st < NST-1 else []
        interleave(a, a1_mfmas(SETA, first=(st == 0)), a1_reads(SETB, 1) + upd)
        a.I("s_waitcnt lgkmcnt(0)")
        a.I("s_barrier")
        if PFD and st + PFD < NST: pf(a)
        interleave(a, a1_mfmas(SETB), a1_reads(SETA, 0) if st < NST-1 else [])
        if st < NST-1: a.I("s_waitcnt lgkmcnt(0)")
    stamp(a, 4)

def a_attention(a, tag):
    w = S_WAVE
    KN = 120; Kt = [128, 136, 144]
    V0B, V1B, VXB = 152, 160, 168
    Q = lambda t,h: 176 + 8*t + 4*h
    P = lambda u: 200 + 4*u
    TMP = 224
    H = 248
    SS = lambda u: 16 + 8*u
    M = lambda u: 88 + 2*u
    O = lambda u: 16 + 12*u
    def pk(d, s0):
        a.I("v_cvt_pk_bf16_f32 v%d, v%d, v%d" % (d, s0, s0+1))
        a.I("v_cvt_pk_bf16_f32 v%d, v%d, v%d" % (d+1, s0+2, s0+3))
    a.I("s_waitcnt vmcnt(0)")
    a.nop(6)
    for t in (NT-1,) + tuple(range(NT-1)):
        pk(Kt[t]+0, acc(t,'Km0')); pk(Kt[t]+4, acc(t,'Km1'))
        pk(V0B+2+2*t, acc(t,'Vm0')); pk(V1B+2+2*t, acc(t,'Vm1')); pk(VXB+2+2*t, acc(t,'E2'))
        pk(TMP+2*t, acc(t,'E1'))
        a.I("v_mov_b32 v%d, 0" % (Kt[t]+2)); a.I("v_mov_b32 v%d, 0" % (Kt[t]+3))
        pk(Q(t,0)+0, acc(t,'Qm0')); pk(Q(t,1)+2, acc(t,'Qm1'))
    pk(H, ACC_HK); pk(H+4, ACC_HV)
    a.I("v_mov_b32 v%d, v%d" % (H+6, H)); a.I("v_mov_b32 v%d, v%d" % (H+7, H+1))
    a.I("v_mov_b32 v%d, 0" % (H+2)); a.I("v_mov_b32 v%d, 0" % (H+3))
    a.I("v_lshlrev_b32 v11, 3, v10")
    for t in range(NT):
        for i in range(2): a.I("v_permlane32_swap_b32 v%d, v%d" % (TMP+2*t+i, Kt[t]+2+i))
    for i in range(2): a.I("v_permlane32_swap_b32 v%d, v%d" % (H+6+i, H+2+i))
    a.I("s_cmp_ge_u32 s%d, 2" % w)
    a.I("s_cselect_b64 s[%d:%d], -1, 0" % (M0A, M0A+1))
    a.I("s_add_u32 s%d, s%d, 1" % (T0, w)); a.I("s_mul_i32 s%d, s%d, 3072" % (T0, T0)); a.I("s_add_u32 s%d, s%d, %d" % (T0, T0, L_EX))
    a.I("v_add_u32 v12, s%d, v11" % T0)
    a.I("v_cndmask_b32 v%d, v%d, v%d, s[%d:%d]" % (H, H, H+2, M0A, M0A+1))
    a.I("v_cndmask_b32 v%d, v%d, v%d, s[%d:%d]" % (H+1, H+1, H+3, M0A, M0A+1))
    a.I("s_cmp_eq_u32 s%d, 1" % w); a.I("s_cselect_b32 s%d, 2, 0" % T1)
    a.I("s_cmp_eq_u32 s%d, 2" % w); a.I("s_cselect_b32 s%d, 1, s%d" % (T1, T1))
    a.I("s_lshl_b32 s%d, s%d, 9" % (T1, T1)); a.I("s_add_u32 s%d, s%d, %d" % (T1, T1, L_EX))
    a.I("s_add_u32 s%d, s%d, 3" % (T2, w)); a.I("s_lshl_b32 s%d, s%d, 9" % (T2, T2)); a.I("s_add_u32 s%d, s%d, %d" % (T2, T2, L_EX))
    a.I("v_add_u32 v13, s%d, v11" % T1)
    a.I("v_add_u32 v14, s%d, v11" % T2)
    lt = NT-1
    a.I("ds_write_b64 v12, %s offset:%d" % (v(Kt[lt]+0,2), 0*512))
    a.I("ds_write_b64 v12, %s offset:%d" % (v(Kt[lt]+2,2), 1*512))
    a.I("ds_write_b64 v12, %s offset:%d" % (v(Kt[lt]+4,2), 2*512))
    a.I("ds_write_b64 v12, %s offset:%d" % (v(V0B+2+2*lt,2), 3*512))
    a.I("ds_write_b64 v12, %s offset:%d" % (v(V1B+2+2*lt,2), 4*512))
    a.I("ds_write_b64 v12, %s offset:%d" % (v(VXB+2+2*lt,2), 5*512))
    a.I("s_cmp_eq_u32 s%d, 3" % w)
    a.I("s_cbranch_scc1 AT_NH_%s" % tag)
    a.I("ds_write_b64 v13, %s" % v(H,2))
    a.I("ds_write_b64 v14, %s" % v(H+4,2))
    a.L("AT_NH_%s" % tag)
    a.I("s_mov_b64 s[%d:%d], 0xffff" % (M0A, M0A+1))
    a.I("s_mov_b32 s%d, 0xffff0000" % M0B); a.I("s_mov_b32 s%d, 0" % (M0B+1))
    for t in range(NT):
        for i in range(2):
            a.I("v_cndmask_b32 v%d, 0, v%d, s[%d:%d]" % (Q(t,0)+2+i, TMP+2*t+i, M0A, M0A+1))
            a.I("v_cndmask_b32 v%d, 0, v%d, s[%d:%d]" % (Q(t,1)+0+i, TMP+2*t+i, M0B, M0B+1))
    a.I("s_mul_i32 s%d, s%d, 3072" % (T0, w)); a.I("s_add_u32 s%d, s%d, %d" % (T0, T0, L_EX))
    a.I("v_add_u32 v12, s%d, v11" % T0)
    a.I("s_waitcnt lgkmcnt(0)")
    a.I("s_barrier")
    a.I("ds_read_b64 %s, v12 offset:%d" % (v(KN+0,2), 0*512))
    a.I("ds_read_b64 %s, v12 offset:%d" % (v(KN+2,2), 1*512))
    a.I("ds_read_b64 %s, v12 offset:%d" % (v(KN+4,2), 2*512))
    a.I("ds_read_b64 %s, v12 offset:%d" % (v(V0B,2), 3*512))
    a.I("ds_read_b64 %s, v12 offset:%d" % (v(V1B,2), 4*512))
    a.I("ds_read_b64 %s, v12 offset:%d" % (v(VXB,2), 5*512))
    units = [(t,h) for t in range(NT) for h in range(2)]
    NU = len(units)
    Kop = lambda blk, h: v(blk + (0 if h == 0 else 2), 4)
    for u,(t,h) in enumerate(units):
        a.I("v_mfma_f32_16x16x32_bf16 %s, %s, %s, %s" % (v(SS(u)+4,4), Kop(Kt[t],h), v(Q(t,h),4), v(BC,4)))
    for u,(t,h) in enumerate(units):
        if t >= 1: a.I("v_mfma_f32_16x16x32_bf16 %s, %s, %s, %s" % (v(SS(u),4), Kop(Kt[t-1],h), v(Q(t,h),4), v(BP,4)))
    a.I("s_mul_i32 s%d, s%d, 3840" % (T0, w)); a.I("s_add_u32 s%d, s%d, %d" % (T0, T0, L_OB))
    a.I("v_and_b32 v11, 15, v10"); a.I("v_lshlrev_b32 v11, 4, v11"); a.I("v_add_u32 v11, s%d, v11" % T0)
    a.I("v_lshrrev_b32 v12, 4, v10")
    a.I("v_lshrrev_b32 v13, 1, v12"); a.I("v_and_b32 v14, 1, v12")
    a.I("v_lshlrev_b32 v13, 8, v13"); a.I("v_lshl_add_u32 v13, v14, 3, v13")
    a.I("v_add_u32 v1, v13, v11")
    a.I("v_add_u32 v13, 5, v12"); a.I("v_and_b32 v14, 1, v13"); a.I("v_lshrrev_b32 v13, 1, v13")
    a.I("v_lshlrev_b32 v13, 8, v13"); a.I("v_lshl_add_u32 v13, v14, 3, v13")
    a.I("v_add_u32 v2, v13, v11")
    a.I("v_mul_u32_u24 v13, 520, v12")
    a.I("v_add3_u32 v3, v13, v11, 0")
    a.I("v_add_u32 v3, 512, v3")
    a.I("s_waitcnt lgkmcnt(0)")
    for u,(t,h) in enumerate(units):
        if t == 0: a.I("v_mfma_f32_16x16x32_bf16 %s, %s, %s, %s" % (v(SS(u),4), Kop(KN,h), v(Q(t,h),4), v(BP0,4)))
    order = [u for u,(t,h) in enumerate(units) if t >= 1] + [u for u,(t,h) in enumerate(units) if t == 0]
    a.nop(2)
    for u in order:
        s0 = SS(u)
        a.I("v_max3_f32 v%d, v%d, v%d, v%d" % (M(u), s0+4, s0+5, s0+6))
        a.I("v_max3_f32 v%d, v%d, v%d, v%d" % (M(u)+1, s0+7, s0, s0+1))
    for u in order:
        s0 = SS(u)
        a.I("v_max3_f32 v%d, v%d, v%d, v%d" % (M(u), M(u), s0+2, s0+3))
    for u in order:
        a.I("v_max_f32 v%d, v%d, v%d" % (M(u), M(u), M(u)+1))
    for sw in ("v_permlane32_swap_b32", "v_permlane16_swap_b32"):
        for u in order: a.I("v_mov_b32 v%d, v%d" % (M(u)+1, M(u)))
        for u in order: a.I("%s v%d, v%d" % (sw, M(u), M(u)+1))
        for u in order: a.I("v_max_f32 v%d, v%d, v%d" % (M(u), M(u), M(u)+1))
    C = 0.22360679774997896 * 1.4426950408889634
    cbits = struct.unpack('<I', struct.pack('<f', C))[0]
    a.I("s_mov_b32 s%d, 0x%x" % (T1, cbits))
    for u in order: a.I("v_mul_f32 v%d, s%d, v%d" % (M(u), T1, M(u)))
    for u in order:
        for i in range(8): a.I("v_fma_f32 v%d, v%d, s%d, -v%d" % (SS(u)+i, SS(u)+i, T1, M(u)))
        for i in range(8): a.I("v_exp_f32 v%d, v%d" % (SS(u)+i, SS(u)+i))
    for u in order:
        for i in range(4): a.I("v_cvt_pk_bf16_f32 v%d, v%d, v%d" % (P(u)+i, SS(u)+2*i, SS(u)+2*i+1))
    a.nop(1)
    for u,(t,h) in enumerate(units):
        vb = (V0B if h == 0 else V1B) + 2*t
        a.I("v_mfma_f32_16x16x32_bf16 %s, %s, %s, 0" % (v(O(u)+8,4), v(ONES,4), v(P(u),4)))
        a.I("v_mfma_f32_16x16x32_bf16 %s, %s, %s, 0" % (v(O(u),4), v(vb,4), v(P(u),4)))
        a.I("v_mfma_f32_16x16x32_bf16 %s, %s, %s, 0" % (v(O(u)+4,4), v(VXB+2*t,4), v(P(u),4)))
    a.I("s_mul_i32 s%d, s%d, 12" % (T1, S_RB)); a.I("s_mul_i32 s%d, s%d, 3" % (T2, w)); a.I("s_add_u32 s%d, s%d, s%d" % (T1, T1, T2))
    a.I("s_mul_i32 s%d, s%d, 20480" % (T1, T1)); a.I("s_mul_i32 s%d, s%d, 1280" % (T2, S_HG)); a.I("s_add_u32 s%d, s%d, s%d" % (T1, T1, T2))
    a.I("s_movk_i32 s%d, 19200" % T2)
    for i in range(4):
        a.I("v_add_u32 v11, %d, v10" % (64*i))
        a.I("v_mul_u32_u24 v12, 820, v11"); a.I("v_lshrrev_b32 v12, 16, v12")
        a.I("v_mul_lo_u32 v12, v12, s%d" % T2)
        a.I("v_lshl_add_u32 v12, v11, 4, v12")
        a.I("v_add_u32 v%d, s%d, v12" % (4+i, T1))
    a.I("v_cmp_gt_u32 vcc, 48, v10")
    a.I("v_mov_b32 v11, 0x7ffffff0")
    a.I("s_nop 0")
    a.I("v_cndmask_b32 v7, v11, v7, vcc")
    a.I("v_lshlrev_b32 v8, 4, v10"); a.I("v_add_u32 v8, s%d, v8" % T0)
    for u in range(NU): a.I("v_rcp_f32 v%d, v%d" % (O(u)+8, O(u)+8))
    for u in range(NU):
        for i in range(8): a.I("v_mul_f32 v%d, v%d, v%d" % (O(u)+i, O(u)+i, O(u)+8))
        pk(P(u), O(u)); pk(P(u)+2, O(u)+4)
    for u,(t,h) in enumerate(units):
        a.I("ds_write_b64 v%d, %s offset:%d" % (1+h, v(P(u),2), t*1280))
    for t in range(NT):
        u0, u1 = 2*t, 2*t+1
        for i in range(2): a.I("v_cndmask_b32 v%d, v%d, v%d, s[%d:%d]" % (TMP+2*t+i, P(u1)+2+i, P(u0)+2+i, M0A, M0A+1))
    a.I("s_mov_b32 exec_hi, 0")
    for t in range(NT): a.I("ds_write_b64 v3, %s offset:%d" % (v(TMP+2*t,2), t*1280))
    a.I("s_mov_b64 exec, -1")
    srd(a, R2, P_WS, SZ, WS_O)
    a.I("s_waitcnt lgkmcnt(0)")
    for i in range(4): a.I("ds_read_b128 %s, v8 offset:%d" % (v(120+4*i,4), 1024*i))
    for i in range(4):
        a.I("s_waitcnt lgkmcnt(%d)" % (3-i))
        a.I("buffer_store_dwordx4 %s, v%d, s[%d:%d], 0 offen%s" % (v(120+4*i,4), 4+i, R2, R2+3, SC1))
    stamp(a, 5)

def load_seed(a):
    a.I("s_load_dword s%d, s[%d:%d], 0x%x" % (S_NONCE, P_WS, P_WS+1, WS_SEED))
def make_nonce(a):
    a.I("s_mul_i32 s%d, s%d, 0x9e3779b1" % (S_NONCE, S_NONCE))
    a.I("s_add_u32 s%d, s%d, 0x85ebca6b" % (S_NONCE, S_NONCE))
def flag_store(a, sidx):
    a.I("s_lshl_b32 s%d, s%d, 7" % (T0, sidx))
    a.I("s_mov_b64 exec, 1")
    a.I("v_mov_b32 v1, s%d" % T0); a.I("v_mov_b32 v2, s%d" % S_NONCE)
    a.I("buffer_store_dword v2, v1, s[%d:%d], 0 offen sc1" % (R4, R4+3))
    a.I("s_mov_b64 exec, -1")
def poll(a, tag, nlanes):
    a.I("s_mov_b64 exec, 0x%x" % ((1 << nlanes) - 1) if nlanes < 32 else "s_mov_b32 exec_lo, -1\ns_mov_b32 exec_hi, 0" if nlanes == 32 else "s_mov_b64 exec, -1")
    a.I("s_mov_b32 s%d, 0" % T0)
    a.L("POLL_%s" % tag)
    a.I("buffer_load_dword v2, v1, s[%d:%d], 0 offen sc1" % (R4, R4+3))
    a.I("s_add_u32 s%d, s%d, 1" % (T0, T0))
    a.I("s_waitcnt vmcnt(0)")
    a.I("v_cmp_ne_u32 vcc, s%d, v2" % S_NONCE)
    a.I("s_cmp_gt_u32 s%d, 200000" % T0)
    a.I("s_cbranch_scc1 POLLED_%s" % tag)
    a.I("s_cmp_eq_u64 vcc, 0")
    a.I("s_cbranch_scc1 POLLED_%s" % tag)
    a.I("s_sleep 1")
    a.I("s_branch POLL_%s" % tag)
    a.L("POLLED_%s" % tag)
    a.I("s_mov_b64 exec, -1")

def a2_wo_dma(a):
    a.I("s_sub_u32 s%d, s%d, 4" % (T5, S_WAVE))
    srd(a, R0, P_WO, 640*1280)
    a.I("v_lshrrev_b32 v1, 3, v10")
    a.I("v_bfe_u32 v2, v1, 1, 1")
    a.I("s_and_b32 s%d, s%d, 1" % (T0, T5)); a.I("s_lshl_b32 s%d, s%d, 1" % (T0, T0))
    a.I("v_or_b32 v2, s%d, v2" % T0)
    a.I("v_lshlrev_b32 v2, 1, v2")
    a.I("v_and_b32 v3, 7, v10")
    a.I("v_xor_b32 v2, v2, v3")
    a.I("s_lshl_b32 s%d, s%d, 3" % (T0, T5))
    a.I("v_add_u32 v1, s%d, v1" % T0)
    a.I("v_mul_u32_u24 v1, 1280, v1")
    a.I("v_lshl_add_u32 v1, v2, 4, v1")
    a.I("s_lshl_b32 s%d, s%d, 7" % (T0, S_CB))
    a.I("v_add_u32 v1, s%d, v1" % T0)
    a.I("s_lshl_b32 s%d, s%d, 10" % (T1, T5))
    a.I("s_mov_b32 s%d, 0" % T2)
    for j in range(20):
        a.I("s_add_u32 m0, s%d, %d" % (T1, L_WO + 4096*j))
        a.I("s_nop 0")
        a.I("buffer_load_dwordx4 v1, s[%d:%d], s%d offen lds" % (R0, R0+3, T2))
        if j < 19: a.I("s_add_u32 s%d, s%d, 40960" % (T2, T2))

def a2_compute(a):
    OF = lambda ks, t: 16 + (ks*2 + t)*4
    AC = lambda t, j: 176 + (t*4 + j)*4
    WF = lambda S, j: 208 + S*16 + j*4
    w = S_WAVE
    srd(a, R2, P_WS, SZ, WS_O)
    a.I("s_lshl_b32 s%d, s%d, 3" % (T0, S_RB2)); a.I("s_lshl_b32 s%d, s%d, 1" % (T1, w)); a.I("s_add_u32 s%d, s%d, s%d" % (T0, T0, T1))
    a.I("s_mul_i32 s%d, s%d, 20480" % (T0, T0))
    a.I("v_lshlrev_b32 v1, 4, v10"); a.I("v_add_u32 v1, s%d, v1" % T0)
    a.I("v_add_u32 v2, 20480, v1")
    for k4 in range(5):
        a.I("s_mov_b32 s%d, %d" % (T1, 4096*k4))
        for kk in range(4):
            for t in range(2):
                a.I("buffer_load_dwordx4 %s, v%d, s[%d:%d], s%d offen offset:%d%s" % (v(OF(4*k4+kk,t),4), 1+t, R2, R2+3, T1, 1024*kk, SC1))
    a.I("v_lshrrev_b32 v11, 4, v10")
    a.I("v_bfe_u32 v12, v10, 2, 2")
    a.I("v_lshl_add_u32 v13, v11, 3, v12")
    a.I("v_lshlrev_b32 v13, 7, v13")
    a.I("v_lshrrev_b32 v14, 1, v12")
    a.I("v_and_b32 v15, 1, v11")
    a.I("v_lshl_add_u32 v14, v15, 1, v14")
    a.I("v_lshlrev_b32 v14, 1, v14")
    a.I("v_bfe_u32 v15, v10, 1, 1")
    a.I("v_lshl_add_u32 v13, v15, 4, v13")
    a.I("v_and_b32 v15, 1, v10")
    a.I("v_lshl_add_u32 v13, v15, 3, v13")
    for j in range(4):
        a.I("v_xor_b32 v15, %d, v14" % (2*j))
        a.I("v_lshl_add_u32 v%d, v15, 4, v13" % (3+j))
    def reads(S, ks):
        r = []
        o = ks*4096 - (40960 if ks >= 10 else 0)
        for j in range(4):
            for hb in range(2):
                r.append("ds_read_b64_tr_b16 %s, v%d offset:%d" % (v(WF(S,j)+2*hb,2), 3+j, L_WO + o + hb*512))
        return r
    for r in reads(0, 0): a.I(r)
    srd(a, R3, P_OUT, 2048*2560)
    a.I("s_lshl_b32 s%d, s%d, 7" % (T0, S_RB2)); a.I("s_lshl_b32 s%d, s%d, 5" % (T1, w)); a.I("s_add_u32 s%d, s%d, s%d" % (T0, T0, T1))
    a.I("v_and_b32 v12, 15, v10"); a.I("v_add_u32 v12, s%d, v12" % T0)
    a.I("v_mul_u32_u24 v12, 2560, v12")
    a.I("v_and_b32 v13, 1, v11"); a.I("v_lshlrev_b32 v13, 5, v13")
    a.I("v_lshrrev_b32 v14, 1, v11"); a.I("v_lshl_add_u32 v13, v14, 4, v13")
    a.I("s_lshl_b32 s%d, s%d, 7" % (T0, S_CB))
    a.I("v_add3_u32 v7, v12, v13, s%d" % T0)
    a.I("v_add_u32 v8, 40960, v7")
    a.I("s_mov_b32 s%d, 40960" % T1)
    for ks in range(20):
        S = ks & 1
        a.I("s_waitcnt vmcnt(%d) lgkmcnt(0)" % (38 - 2*ks))
        ms = []
        for j in range(4):
            for t in range(2):
                c = "0" if ks == 0 else v(AC(t,j),4)
                ms.append("v_mfma_f32_16x16x32_bf16 %s, %s, %s, %s" % (v(AC(t,j),4), v(WF(S,j),4), v(OF(ks,t),4), c))
        oth = []
        if ks == 9: oth += ["v_add_u32 v%d, s%d, v%d" % (3+j, T1, 3+j) for j in range(4)]
        if ks < 19: oth += reads(1-S, ks+1)
        interleave(a, ms, oth)
    a.nop(7)
    PK = 16
    for t in range(2):
        for p in range(2):
            d = PK + (t*2+p)*4
            for hh in range(2):
                s0 = AC(t, 2*p+hh)
                a.I("v_cvt_pk_bf16_f32 v%d, v%d, v%d" % (d+2*hh, s0, s0+1))
                a.I("v_cvt_pk_bf16_f32 v%d, v%d, v%d" % (d+2*hh+1, s0+2, s0+3))
    a.nop(1)
    for t in range(2):
        for p in range(2):
            d = PK + (t*2+p)*4
            a.I("v_permlane16_swap_b32 v%d, v%d" % (d, d+2))
            a.I("v_permlane16_swap_b32 v%d, v%d" % (d+1, d+3))
    for t in range(2):
        for p in range(2):
            d = PK + (t*2+p)*4
            a.I("buffer_store_dwordx4 %s, v%d, s[%d:%d], 0 offen offset:%d" % (v(d,4), 7+t, R3, R3+3, 64*p))

H_SZ = 8320; U_SZ = 4608
L_H = 0; L_U = 8*H_SZ; L_Q = L_U + 8*U_SZ; L_BEND = L_Q + 32768
L_T = L_U
L_Y = 0; Y_P = 4160
S_B = S_IDX

def b_ids(a):
    a.I("s_mul_i32 s%d, s%d, 10" % (T0, T0))
    a.I("s_add_u32 s%d, s%d, s%d" % (S_B, T0, T1))
    a.I("s_sub_u32 s%d, s%d, 22" % (S_B, S_B))

def b1_loads(a):
    KR = lambda i: 16 + 4*i; VR = lambda j: 44 + 4*j; WR = 60
    a.I("v_and_b32 v11, 255, v0")
    a.I("v_lshrrev_b32 v12, 3, v11")
    a.I("v_and_b32 v13, 7, v11")
    a.I("s_lshr_b32 s%d, s%d, 3" % (S_RB2, S_B))
    a.I("s_and_b32 s%d, s%d, 7" % (T0, S_B)); a.I("s_lshl_b32 s%d, s%d, 1" % (T0, T0)); a.I("s_lshr_b32 s%d, s%d, 2" % (T1, S_WAVE))
    a.I("s_add_u32 s%d, s%d, s%d" % (S_RB, T0, T1))
    a.I("s_lshl_b32 s%d, s%d, 7" % (T0, S_RB))
    a.I("v_lshl_add_u32 v14, v12, 2, s%d" % T0)
    a.I("v_mul_u32_u24 v14, 1280, v14")
    a.I("s_lshl_b32 s%d, s%d, 7" % (T0, S_RB2))
    a.I("v_lshl_add_u32 v14, v13, 4, v14")
    a.I("v_add_u32 v1, s%d, v14" % T0)
    a.I("v_subrev_u32 v2, 1280, v1"); a.I("v_subrev_u32 v3, 2560, v1"); a.I("v_subrev_u32 v4, 3840, v1")
    a.I("s_lshl_b32 s%d, s%d, 9" % (T0, S_RB2))
    a.I("v_lshl_add_u32 v5, v13, 6, s%d" % T0)
    a.I("s_waitcnt lgkmcnt(0)")
    srd(a, R0, P_K, SZ); srd(a, R1, P_V, SZ); srd(a, R2, P_SH, 640*8)
    for i in range(4): a.I("buffer_load_dwordx4 %s, v5, s[%d:%d], 0 offen offset:%d" % (v(WR+4*i,4), R2, R2+3, 16*i))
    for i in range(3): a.I("buffer_load_dwordx4 %s, v%d, s[%d:%d], 0 offen" % (v(KR(i),4), 4-i, R0, R0+3))
    for i in range(4): a.I("buffer_load_dwordx4 %s, v1, s[%d:%d], 0 offen offset:%d" % (v(KR(3+i),4), R0, R0+3, 1280*i))
    for j in range(4): a.I("buffer_load_dwordx4 %s, v1, s[%d:%d], 0 offen offset:%d" % (v(VR(j),4), R1, R1+3, 1280*j))

def b_h_loads(a):
    a.I("s_lshl_b32 s%d, s%d, 3" % (T0, S_B)); a.I("s_add_u32 s%d, s%d, s%d" % (T0, T0, S_WAVE))
    a.I("s_lshl_b32 s%d, s%d, 12" % (T1, T0))
    a.I("s_add_u32 s%d, s%d, s%d" % (R3, P_H, T1)); a.I("s_addc_u32 s%d, s%d, 0" % (R3+1, P_H+1))
    a.I("s_and_b32 s%d, s%d, 0xffff" % (R3+1, R3+1)); a.I("s_mov_b32 s%d, 4096" % (R3+2)); a.I("s_mov_b32 s%d, 0x20000" % (R3+3))
    a.I("v_lshlrev_b32 v6, 4, v10")
    for i in range(4): a.I("buffer_load_dwordx4 %s, v6, s[%d:%d], 0 offen offset:%d" % (v(128+4*i,4), R3, R3+3, 1024*i))
    for i in range(4): a.I("buffer_load_dwordx4 %s, v6, s[%d:%d], 0 offen offset:%d" % (v(144+4*i,4), R3, R3+3, 1024*i+4))
    a.I("s_and_b32 s%d, s%d, 0xfffffffe" % (T1, T0)); a.I("s_lshl_b32 s%d, s%d, 1" % (T1, T1))
    a.I("s_add_u32 s%d, s%d, s%d" % (T2, P_D, T1)); a.I("s_addc_u32 s%d, s%d, 0" % (T3, P_D+1))
    a.I("s_load_dword s%d, s[%d:%d], 0" % (S_CB, T2, T3))

def b_q_dma(a):
    srd(a, R1, P_Q, SZ)
    a.I("s_lshl_b32 s%d, s%d, 8" % (T0, S_WAVE))
    a.I("v_add_u32 v7, s%d, v10" % T0)
    a.I("v_mul_u32_u24 v7, 1280, v7")
    a.I("s_lshl_b32 s%d, s%d, 4" % (T1, S_B))
    a.I("v_add_u32 v7, s%d, v7" % T1)
    a.I("s_lshl_b32 s%d, s%d, 12" % (T0, S_WAVE))
    a.I("s_mov_b32 s%d, 0" % T1)
    for i in range(4):
        a.I("s_add_u32 m0, s%d, %d" % (T0, L_Q + 1024*i))
        a.I("s_nop 0")
        a.I("buffer_load_dwordx4 v7, s[%d:%d], s%d offen lds" % (R1, R1+3, T1))
        if i < 3: a.I("s_add_u32 s%d, s%d, 81920" % (T1, T1))

def b1_compute(a):
    KR = lambda i: 16 + 4*i; VR = lambda j: 44 + 4*j; WR = 60
    Pq = 80; U = 88; OUTR = 96
    a.I("s_mov_b32 s%d, 0x05040100" % T0); a.I("s_mov_b32 s%d, 0x07060302" % T1)
    for c in range(8):
        rc, hc = c >> 1, c & 1
        sel = T0 if hc == 0 else T1
        for i in range(1, 7):
            a.I("v_perm_b32 v%d, v%d, v%d, s%d" % (Pq+i-1, KR(i-1)+rc, KR(i)+rc, sel))
        for j in range(4):
            a.I("v_dot2_f32_bf16 v%d, v%d, v%d, 0" % (U+j, Pq+(j+3-2)-1, WR+2*c+1))
        for j in range(4):
            a.I("v_dot2_f32_bf16 v%d, v%d, v%d, v%d" % (U+j, Pq+(j+3)-1, WR+2*c, U+j))
        for j in range(4):
            if hc == 0: a.I("v_lshlrev_b32 v%d, 16, v%d" % (92+j, VR(j)+rc))
            else: a.I("v_and_b32 v%d, 0xffff0000, v%d" % (92+j, VR(j)+rc))
        for j in range(4): a.I("v_mul_f32 v%d, v%d, v%d" % (U+j, U+j, 92+j))
        a.I("v_cvt_pk_bf16_f32 v%d, v%d, v%d" % (OUTR+2*c, U+3, U+2))
        a.I("v_cvt_pk_bf16_f32 v%d, v%d, v%d" % (OUTR+2*c+1, U+1, U))
    a.I("s_lshr_b32 s%d, s%d, 2" % (T2, S_WAVE)); a.I("s_lshl_b32 s%d, s%d, 14" % (T2, T2)); a.I("s_add_u32 s%d, s%d, %d" % (T2, T2, L_T))
    a.I("v_sub_u32 v14, 31, v12"); a.I("v_lshlrev_b32 v15, 1, v13"); a.I("v_xor_b32 v14, v14, v15")
    a.I("v_lshlrev_b32 v14, 3, v14"); a.I("v_lshl_add_u32 v14, v13, 11, v14"); a.I("v_add_u32 v14, s%d, v14" % T2)
    for c in range(8): a.I("ds_write_b64 v14, %s offset:%d" % (v(OUTR+2*c,2), 256*c))
    a.I("v_lshrrev_b32 v1, 4, v11")
    a.I("v_and_b32 v2, 15, v11")
    a.I("v_lshrrev_b32 v3, 7, v11")
    for i in range(4):
        a.I("v_add_u32 v4, %d, v3" % (2*i)); a.I("v_xor_b32 v4, v4, v2"); a.I("v_lshlrev_b32 v4, 4, v4")
        a.I("v_lshl_add_u32 v4, v1, 8, v4"); a.I("v_add_u32 v%d, s%d, v4" % (80+i, T2))
    srd(a, R2, P_WS, SZ, WS_UT)
    a.I("s_lshl_b32 s%d, s%d, 18" % (T0, S_RB2))
    a.I("s_lshl_b32 s%d, s%d, 8" % (T1, S_RB)); a.I("s_sub_u32 s%d, s%d, s%d" % (T0, T0, T1)); a.I("s_add_u32 s%d, s%d, 3840" % (T0, T0))
    a.I("v_lshlrev_b32 v5, 12, v1"); a.I("v_lshl_add_u32 v5, v2, 4, v5"); a.I("v_add_u32 v5, s%d, v5" % T0)
    a.I("s_waitcnt lgkmcnt(0)")
    a.I("s_barrier")
    for i in range(4): a.I("ds_read_b128 %s, v%d offset:%d" % (v(96+4*i,4), 80+i, 4096*i))
    a.I("s_mov_b32 s%d, 0" % T1)
    for i in range(4):
        a.I("s_waitcnt lgkmcnt(%d)" % (3-i))
        a.I("buffer_store_dwordx4 %s, v5, s[%d:%d], s%d offen%s" % (v(96+4*i,4), R2, R2+3, T1, SC1))
        if i < 3: a.I("s_add_u32 s%d, s%d, 65536" % (T1, T1))

def b_h_stage(a):
    a.I("s_mul_i32 s%d, s%d, %d" % (T0, S_WAVE, H_SZ))
    a.I("v_lshlrev_b32 v6, 4, v10"); a.I("v_add_u32 v6, s%d, v6" % T0)
    a.I("v_readfirstlane_b32 s%d, v128" % T1)
    for i in range(16): a.I("v_alignbit_b32 v%d, v%d, v%d, 16" % (144+i, 144+i, 128+i))
    for i in range(4):
        a.I("ds_write_b128 v6, %s offset:%d" % (v(128+4*i,4), L_H + 32 + 1024*i))
        a.I("ds_write_b128 v6, %s offset:%d" % (v(144+4*i,4), L_H + 4160 + 32 + 1024*i))
    a.I("s_lshl_b32 s%d, s%d, 16" % (T1, T1))
    a.I("v_lshlrev_b32 v7, 2, v10"); a.I("v_add_u32 v7, s%d, v7" % T0)
    a.I("v_mov_b32 v8, 0"); a.I("v_mov_b32 v9, s%d" % T1)
    a.I("v_cmp_eq_u32 vcc, 7, v10")
    a.I("s_mov_b64 exec, 0xff")
    a.I("s_nop 0")
    a.I("v_cndmask_b32 v9, v8, v9, vcc")
    a.I("ds_write_b32 v7, v8 offset:%d" % L_H)
    a.I("ds_write_b32 v7, v9 offset:%d" % (L_H + 4160))
    a.I("s_mov_b64 exec, -1")

def b_u_stage(a):
    srd(a, R2, P_WS, SZ, WS_UT)
    a.I("s_lshl_b32 s%d, s%d, 3" % (T0, S_B)); a.I("s_add_u32 s%d, s%d, s%d" % (T0, T0, S_WAVE)); a.I("s_lshl_b32 s%d, s%d, 12" % (T0, T0))
    a.I("v_lshlrev_b32 v6, 4, v10"); a.I("v_add_u32 v7, s%d, v6" % T0)
    for i in range(4): a.I("buffer_load_dwordx4 %s, v7, s[%d:%d], 0 offen offset:%d%s" % (v(128+4*i,4), R2, R2+3, 1024*i, SC1))
    a.I("s_mul_i32 s%d, s%d, %d" % (T0, S_WAVE, U_SZ)); a.I("s_add_u32 s%d, s%d, %d" % (T0, T0, L_U))
    a.I("v_add_u32 v6, s%d, v6" % T0)
    for i in range(4): a.I("v_mov_b32 v%d, 0" % (144+i))
    a.I("s_mov_b32 exec_hi, 0")
    a.I("ds_write_b128 v6, v[144:147] offset:4096")
    a.I("s_mov_b64 exec, -1")
    for i in range(4):
        a.I("s_waitcnt vmcnt(%d)" % (3-i))
        a.I("ds_write_b128 v6, %s offset:%d" % (v(128+4*i,4), 1024*i))

def b2_main(a):
    AF = lambda S, x: 16 + S*64 + x*4
    BF = lambda S, x: 48 + S*64 + x*4
    AC = lambda t: 144 + 4*t
    VA = 1; VB = 5
    a.I("v_and_b32 v11, 15, v10"); a.I("v_lshrrev_b32 v12, 4, v10")
    a.I("v_and_b32 v13, 1, v11")
    a.I("v_lshlrev_b32 v14, 1, v11")
    a.I("v_cmp_eq_u32 vcc, 1, v13")
    a.I("v_add_u32 v15, 2, v14"); a.I("v_add_u32 v14, 4160, v14")
    a.I("v_cndmask_b32 v14, v14, v15, vcc")
    a.I("v_lshl_add_u32 v14, v12, 4, v14")
    a.I("s_mul_i32 s%d, s%d, %d" % (T0, S_WAVE, H_SZ))
    a.I("v_add_u32 v%d, s%d, v14" % (VA, T0))
    for p in range(1, 4): a.I("v_add_u32 v%d, %d, v%d" % (VA+p, 1024*p, VA))
    a.I("s_mul_i32 s%d, s%d, %d" % (T0, S_WAVE, U_SZ)); a.I("s_add_u32 s%d, s%d, %d" % (T0, T0, L_U + 480))
    a.I("v_lshlrev_b32 v14, 5, v11"); a.I("v_lshlrev_b32 v15, 4, v12"); a.I("v_sub_u32 v14, v15, v14")
    a.I("v_add_u32 v%d, s%d, v14" % (VB, T0))
    def reads(S, b):
        r = []
        for x in range(8):
            o = (x & 1)*128 + 16*b
            r.append("ds_read_b128 %s, v%d offset:%d" % (v(BF(S,x),4), VB, 512*(7-x) + 64*b))
            r.append("ds_read2_b32 %s, v%d offset0:%d offset1:%d" % (v(AF(S,x),2), VA + (x>>1), o, o+1))
            r.append("ds_read2_b32 %s, v%d offset0:%d offset1:%d" % (v(AF(S,x)+2,2), VA + (x>>1), o+2, o+3))
        return r
    for r in reads(0, 0): a.I(r)
    for b in range(8):
        S = b & 1
        a.I("s_waitcnt lgkmcnt(0)")
        ms = []
        for aa in range(8):
            for t in range(aa, 8):
                c = "0" if (b == 0 and aa == 0) else v(AC(t),4)
                ms.append("v_mfma_f32_16x16x32_bf16 %s, %s, %s, %s" % (v(AC(t),4), v(AF(S,aa),4), v(BF(S,t-aa),4), c))
        interleave(a, ms, reads(1-S, b+1) if b < 7 else [])

def b2_epilogue(a):
    AC = lambda t: 144 + 4*t
    a.I("s_mul_i32 s%d, s%d, %d" % (T0, S_WAVE, U_SZ)); a.I("s_add_u32 s%d, s%d, %d" % (T0, T0, L_U + 504))
    a.I("v_lshlrev_b32 v14, 5, v11"); a.I("v_lshl_add_u32 v14, v12, 3, v14"); a.I("v_sub_u32 v14, s%d, v14" % T0)
    for t in range(8): a.I("ds_read_b64 %s, v14 offset:%d" % (v(16+2*t,2), 512*(7-t)))
    a.I("s_and_b32 s%d, s%d, 1" % (T0, S_WAVE))
    a.I("s_cmp_eq_u32 s%d, 0" % T0)
    a.I("s_cbranch_scc1 B_DLO")
    a.I("s_and_b32 s%d, s%d, 0xffff0000" % (S_CB, S_CB))
    a.I("s_branch B_DD")
    a.L("B_DLO")
    a.I("s_lshl_b32 s%d, s%d, 16" % (S_CB, S_CB))
    a.L("B_DD")
    a.I("v_lshl_add_u32 v13, v11, 2, v12"); a.I("v_lshrrev_b32 v15, 2, v11"); a.I("v_xor_b32 v13, v13, v15")
    a.I("s_mul_i32 s%d, s%d, %d" % (T0, S_WAVE, Y_P))
    a.I("v_lshlrev_b32 v13, 3, v13"); a.I("v_add_u32 v13, s%d, v13" % T0)
    a.I("s_barrier")
    a.I("s_waitcnt lgkmcnt(0)")
    for t in range(8):
        d0, d1 = 16+2*t, 16+2*t+1
        a.I("v_and_b32 v32, 0xffff0000, v%d" % d1); a.I("v_lshlrev_b32 v33, 16, v%d" % d1)
        a.I("v_and_b32 v34, 0xffff0000, v%d" % d0); a.I("v_lshlrev_b32 v35, 16, v%d" % d0)
        for r in range(4): a.I("v_fma_f32 v%d, v%d, s%d, v%d" % (32+r, 32+r, S_CB, AC(t)+r))
        a.I("v_cvt_pk_bf16_f32 v%d, v32, v33" % (40+2*t)); a.I("v_cvt_pk_bf16_f32 v%d, v34, v35" % (40+2*t+1))
        a.I("ds_write_b64 v13, %s offset:%d" % (v(40+2*t,2), L_Y + 512*t))
    a.I("v_bfe_u32 v1, v10, 2, 2"); a.I("v_mul_u32_u24 v1, %d, v1" % Y_P)
    a.I("s_lshl_b32 s%d, s%d, 9" % (T0, S_WAVE))
    a.I("v_lshl_add_u32 v1, v12, 5, v1"); a.I("v_add_u32 v1, s%d, v1" % T0)
    a.I("v_and_b32 v2, 3, v10")
    for it in range(4):
        a.I("v_xor_b32 v3, %d, v2" % it); a.I("v_lshl_add_u32 v%d, v3, 3, v1" % (4+it))
    a.I("s_lshl_b32 s%d, s%d, 12" % (T0, S_WAVE)); a.I("s_add_u32 s%d, s%d, %d" % (T0, T0, L_Q))
    a.I("v_lshlrev_b32 v8, 4, v10"); a.I("v_add_u32 v8, s%d, v8" % T0)
    srd(a, R3, P_OUT, 2048*2560)
    a.I("s_lshl_b32 s%d, s%d, 8" % (T0, S_WAVE)); a.I("v_add_u32 v9, s%d, v10" % T0)
    a.I("v_mul_u32_u24 v9, 2560, v9"); a.I("s_lshl_b32 s%d, s%d, 4" % (T0, S_B)); a.I("s_add_u32 s%d, s%d, 1280" % (T0, T0))
    a.I("v_add_u32 v9, s%d, v9" % T0)
    a.I("s_waitcnt vmcnt(0) lgkmcnt(0)")
    a.I("s_barrier")
    for it in range(4):
        d = 64 + 8*it
        a.I("ds_read_b64_tr_b16 %s, v%d offset:%d" % (v(d,2), 4+it, L_Y + 128*it))
        a.I("ds_read_b64_tr_b16 %s, v%d offset:%d" % (v(d+2,2), 4+it, L_Y + 128*it + 4*Y_P))
        a.I("ds_read_b128 %s, v8 offset:%d" % (v(d+4,4), 1024*it))
    a.I("s_mov_b32 s%d, 0" % T1)
    for it in range(4):
        d = 64 + 8*it
        a.I("s_waitcnt lgkmcnt(%d)" % (9 - 3*it))
        for i in range(4):
            a.I("v_lshlrev_b32 v32, 16, v%d" % (d+i)); a.I("v_and_b32 v33, 0xffff0000, v%d" % (d+i))
            a.I("v_lshlrev_b32 v34, 16, v%d" % (d+4+i)); a.I("v_and_b32 v35, 0xffff0000, v%d" % (d+4+i))
            a.I("v_mul_f32 v32, v32, v34"); a.I("v_mul_f32 v33, v33, v35")
            a.I("v_cvt_pk_bf16_f32 v%d, v32, v33" % (100+4*it+i))
        a.I("buffer_store_dwordx4 %s, v9, s[%d:%d], s%d offen" % (v(100+4*it,4), R3, R3+3, T1))
        if it < 3: a.I("s_add_u32 s%d, s%d, %d" % (T1, T1, 64*2560))

def flag_srd(a): srd(a, R4, P_WS, 256*128, WS_FLAG)

def end(a, phase, n=8):
    if PROF:
        a.I("s_waitcnt vmcnt(0)"); stamp(a, 6); rstamp(a, 7); stamp_flush(a, n, phase)
    a.I("s_endpgm")

def gen_phase1(a, tag, fused):
    pass

def build():
    a = Asm()
    LDS = max(NSLOT*SLOT, L_BEND)
    if SPLIT:
        kernel_begin(a, "phase1_kernel")
        prologue(a, "1")
        a.I("s_cmp_ge_u32 s%d, 4" % S_WAVE); a.I("s_cbranch_scc1 A_LOADER1")
        a_compute(a, "1"); a_attention(a, "1"); end(a, 0)
        a.L("A_LOADER1"); a_loader(a, "1"); a.I("s_barrier"); end(a, 0)
        a.L("ROLE_B_1"); b_ids(a); b1_loads(a); a.I("s_waitcnt vmcnt(0)"); stamp(a, 2); b1_compute(a); stamp(a, 3); end(a, 0)
        a.L("END_1"); a.I("s_endpgm")
        kernel_begin(a, "phase2_kernel")
        prologue(a, "2")
        a.I("s_cmp_ge_u32 s%d, 160" % S_IDX); a.I("s_cbranch_scc1 END_2")
        a.I("s_waitcnt lgkmcnt(0)")
        a.I("s_cmp_ge_u32 s%d, 4" % S_WAVE); a.I("s_cbranch_scc1 A_LOADER2")
        a.I("s_barrier"); stamp(a, 2); a2_compute(a); stamp(a, 3); end(a, 1)
        a.L("A_LOADER2"); a2_wo_dma(a); a.I("s_waitcnt vmcnt(0)"); a.I("s_barrier"); end(a, 1)
        a.L("ROLE_B_2"); b_ids(a); a.I("s_waitcnt lgkmcnt(0)")
        b_h_loads(a); b_q_dma(a); a.I("s_waitcnt vmcnt(4)"); b_h_stage(a); b_u_stage(a)
        a.I("s_waitcnt lgkmcnt(0)"); a.I("s_barrier"); stamp(a, 2)
        b2_main(a); stamp(a, 3); b2_epilogue(a); stamp(a, 4); end(a, 1)
        a.L("END_2"); a.I("s_endpgm")
        names = ["phase1_kernel", "phase2_kernel"]
        txt = header([(n, 256, 512, LDS) for n in names])
    else:
        raise SystemExit("fused not yet")
    txt += a.text() + '.section .rodata,"a"\n' + "".join(descriptor(n) for n in names)
    check_hazards(txt)
    open(os.environ.get("OUT", "../k.s"), "w").write(txt)

if __name__ == "__main__":
    build()
```

```python
import os, struct
from common import *

PROF  = int(os.environ.get("PROF", "0"))
SPLIT = int(os.environ.get("SPLIT", "0"))
SC1 = " sc1"

WS_O    = 0x000000
WS_UT   = 0x280000
WS_FLAG = 0x500000
WS_SEED = 0x510000
WS_PROF = 0x800000

P_X, P_W, P_WO, P_Q, P_K, P_V, P_SH, P_H, P_D, P_OUT, P_DBG, P_WS = 4, 6, 8, 10, 12, 14, 16, 18, 20, 22, 24, 26
S_WAVE, S_IDX, S_RB, S_HG = 28, 29, 30, 31
R0, R1, R2, R3, R4 = 32, 36, 40, 44, 48
T0, T1, T2, T3, T4, T5 = 52, 53, 54, 55, 56, 57
M0A, M0B = 58, 60
S_NONCE = 62; S_RB2 = 63; S_CB = 64; S_SEED = 79
S_M = 65
S_SLOT, S_XOFF, S_WOFF, S_ST, S_C = 76, 77, 78, 3, 3
STAMP0 = 80
PFD = int(os.environ.get("PFD", "4"))
S_PFO, S_PFS = 74+3, 74+4
S_PFO, S_PFS = 66, 67
V_PF = 15; V_PFD = 0

def stamp(a, i):
    if PROF: a.I("s_memtime s[%d:%d]" % (STAMP0+2*i, STAMP0+2*i+1))
def rstamp(a, i):
    if PROF: a.I("s_memrealtime s[%d:%d]" % (STAMP0+2*i, STAMP0+2*i+1))
def stamp_flush(a, n, phase):
    if not PROF: return
    a.I("s_waitcnt lgkmcnt(0)")
    a.I("s_mov_b64 exec, 1")
    a.I("s_lshl_b32 s%d, s2, 3" % T0); a.I("s_add_u32 s%d, s%d, s%d" % (T0, T0, S_WAVE)); a.I("s_lshl_b32 s%d, s%d, 6" % (T0, T0))
    srd(a, R4, P_WS, 0x40000, WS_PROF + phase*0x40000)
    a.I("v_mov_b32 v1, s%d" % T0)
    for i in range(n):
        a.I("v_mov_b32 v2, s%d" % (STAMP0+2*i))
        a.I("buffer_store_dword v2, v1, s[%d:%d], 0 offen offset:%d" % (R4, R4+3, 4*i))
        a.I("s_nop 1")
    a.I("s_mov_b64 exec, -1")

def vstamp(a, idx):
    if PROF != 2: return
    a.I("s_memtime s[98:99]")
    a.I("s_waitcnt lgkmcnt(0)")
    if str(idx).startswith("s"):
        a.I("s_mov_b32 m0, %s" % idx)
        a.I("s_nop 3")
        a.I("v_writelane_b32 v63, s98, m0")
    else: a.I("v_writelane_b32 v63, s98, %s" % idx)
def vstamp_flush(a):
    if PROF != 2: return
    a.I("s_lshl_b32 s%d, s2, 3" % T0); a.I("s_add_u32 s%d, s%d, s%d" % (T0, T0, S_WAVE)); a.I("s_lshl_b32 s%d, s%d, 8" % (T0, T0))
    srd(a, R4, P_WS, 0x80000, WS_PROF + 0x100000)
    a.I("v_lshlrev_b32 v1, 2, v10"); a.I("v_add_u32 v1, s%d, v1" % T0)
    a.I("buffer_store_dword v63, v1, s[%d:%d], 0 offen" % (R4, R4+3))

def prologue(a, tag):
    a.I("s_cmp_ge_u32 s2, 256")
    a.I("s_cbranch_scc1 END_%s" % tag)
    if PROF:
        for i in range(2, 11): a.I("s_mov_b32 s%d, -1" % (STAMP0+2*i))
    rstamp(a, 0)
    stamp(a, 1)
    a.I("s_load_dwordx16 s[4:19], s[0:1], 0")
    a.I("s_load_dwordx8 s[20:27], s[0:1], 64")
    a.I("v_lshrrev_b32 v11, 6, v0")
    a.I("v_and_b32 v10, 63, v0")
    a.I("s_and_b32 s%d, s2, 7" % T0)
    a.I("s_lshr_b32 s%d, s2, 3" % T1)
    a.I("v_readfirstlane_b32 s%d, v11" % S_WAVE)
    a.I("s_cmp_ge_u32 s%d, 22" % T1)
    a.I("s_cbranch_scc1 ROLE_B_%s" % tag)
    a.I("s_mul_i32 s%d, s%d, 22" % (T0, T0))
    a.I("s_add_u32 s%d, s%d, s%d" % (S_IDX, T0, T1))
    a.I("s_cmp_ge_u32 s%d, 88" % S_IDX)
    a.I("s_cselect_b32 s%d, 88, 0" % T2)
    a.I("s_cselect_b32 s%d, 8, 0" % T3)
    a.I("s_sub_u32 s%d, s%d, s%d" % (T2, S_IDX, T2))
    a.I("s_lshr_b32 s%d, s%d, 3" % (S_RB, T2))
    a.I("s_and_b32 s%d, s%d, 7" % (T2, T2))
    a.I("s_add_u32 s%d, s%d, s%d" % (S_HG, T2, T3))
    a.I("s_mul_i32 s%d, s%d, 6554" % (T2, S_IDX))
    a.I("s_lshr_b32 s%d, s%d, 16" % (S_RB2, T2))
    a.I("s_mul_i32 s%d, s%d, 10" % (T2, S_RB2))
    a.I("s_sub_u32 s%d, s%d, s%d" % (S_CB, S_IDX, T2))

NT = 3
XROWS = 16*(4*NT+1)
XB = XROWS*128
WB = 64*240
SCR = XB + WB
SLOT = XB + WB + 1024
NSLOT = 3; NST = 10
TILES = ['Qm0','Qm1','Km0','Km1','E1','Vm0','Vm1','E2']
ORI   = dict(Qm0=1,Qm1=1,Km0=1,Km1=1,E1=1,Vm0=2,Vm1=2,E2=2)
COL   = dict(Qm0=0,Qm1=40,Km0=80,Km1=120,Vm0=160,Vm1=200)
V_X0, V_X1, V_H0, V_H1, V_W, V_E1, V_E2, V_HK, V_HV, V_LANE = 1,2,3,4,5,6,7,8,9,10
ACC = 16; SETA = 120; SETB = 176
BP0, BP, BC, ONES = 232, 236, 240, 244
def acc(t, name): return ACC + (t*8 + TILES.index(name))*4
ACC_HK = ACC + NT*32; ACC_HV = ACC_HK + 4
def wfrag(S, name): return S + TILES.index(name)*4
def hkf(S): return S + 32
def hvf(S): return S + 36
def xfrag(S, i): return S + 40 + 4*i
L_WO = 0
L_EX = 81920
L_OB = L_EX + 5*3072

def a_loader(a, tag):
    NX, NW = 7, 4
    VX, VW = 16, 24
    a.C("---- A loader (wave a = s_wave-4)")
    a.I("s_sub_u32 s%d, s%d, 4" % (T5, S_WAVE))
    a.I("v_lshrrev_b32 v1, 3, v10")
    a.I("v_and_b32 v2, 7, v10")
    a.I("v_xor_b32 v2, v2, v1")
    a.I("v_lshlrev_b32 v2, 4, v2")
    a.I("s_mul_i32 s%d, s%d, 192" % (T0, S_RB))
    a.I("s_lshl_b32 s%d, s%d, 3" % (T1, T5))
    a.I("s_add_u32 s%d, s%d, s%d" % (T0, T0, T1))
    a.I("s_sub_i32 s%d, s%d, 16" % (T0, T0))
    a.I("v_add_u32 v1, s%d, v1" % T0)
    a.I("s_movk_i32 s%d, 1280" % T1)
    for j in range(NX):
        a.I("v_add_u32 v3, %d, v1" % (32*j))
        a.I("v_max_i32 v3, 0, v3")
        a.I("v_mul_lo_u32 v3, v3, s%d" % T1)
        a.I("v_add_u32 v%d, v3, v2" % (VX+j))
    a.I("s_lshl_b32 s%d, s%d, 10" % (T0, T5))
    for j in range(NX):
        a.I("s_add_u32 s%d, s%d, %d" % (S_M+j, T0, 4096*j))
    a.I("s_cmp_ge_u32 s%d, 2" % T5)
    a.I("s_cselect_b32 s%d, %d, s%d" % (S_M+NX-1, SCR, S_M+NX-1))
    a.I("s_cselect_b32 s%d, 0x7ffffff0, 0" % T2)
    a.I("v_or_b32 v%d, s%d, v%d" % (VX+NX-1, T2, VX+NX-1))
    a.I("s_waitcnt lgkmcnt(0)")
    srd(a, R0, P_X, SZ)
    srd(a, R1, P_W, 640*3840)
    a.I("s_mov_b32 s%d, 0" % S_SLOT); a.I("s_mov_b32 s%d, 0" % S_XOFF); a.I("s_mov_b32 s%d, 0" % S_WOFF)
    def issue_x():
        for j in range(NX):
            a.I("s_add_u32 m0, s%d, s%d" % (S_SLOT, S_M+j))
            a.I("s_nop 0")
            a.I("buffer_load_dwordx4 v%d, s[%d:%d], s%d offen lds" % (VX+j, R0, R0+3, S_XOFF))
    def issue_w():
        for j in range(NW):
            a.I("s_add_u32 m0, s%d, s%d" % (S_SLOT, S_M+NX+j))
            a.I("s_nop 0")
            a.I("buffer_load_dwordx4 v%d, s[%d:%d], s%d offen lds" % (VW+j, R1, R1+3, S_WOFF))
    def advance():
        a.I("s_add_u32 s%d, s%d, 128" % (S_XOFF, S_XOFF))
        a.I("s_add_u32 s%d, s%d, %d" % (S_WOFF, S_WOFF, 64*3840))
        a.I("s_add_u32 s%d, s%d, %d" % (S_SLOT, S_SLOT, SLOT))
        a.I("s_cmp_eq_u32 s%d, %d" % (S_SLOT, NSLOT*SLOT))
        a.I("s_cselect_b32 s%d, 0, s%d" % (S_SLOT, S_SLOT))
    stamp(a, 2)
    if PROF == 2: a.I("v_mov_b32 v63, -1")
    vstamp(a, "0")
    issue_x()
    a.I("s_mul_i32 s%d, s%d, 80" % (T0, S_HG))
    a.I("s_movk_i32 s%d, 4370" % T1)
    a.I("s_movk_i32 s%d, 3840" % T2)
    a.I("s_lshl_b32 s%d, s%d, 6" % (T3, T5))
    for j in range(NW):
        a.I("v_add_u32 v1, s%d, v10" % T3)
        if j: a.I("v_add_u32 v1, %d, v1" % (256*j))
        a.I("v_mul_lo_u32 v2, v1, s%d" % T1)
        a.I("v_lshrrev_b32 v2, 16, v2")
        a.I("v_mul_u32_u24 v3, 15, v2")
        a.I("v_sub_u32 v1, v1, v3")
        a.I("v_and_b32 v3, 0xfffffff8, v2")
        a.I("v_and_b32 v4, 1, v2")
        a.I("v_lshl_add_u32 v3, v4, 2, v3")
        a.I("v_bfe_u32 v4, v2, 1, 2")
        a.I("v_add_u32 v3, v3, v4")
        a.I("v_mul_lo_u32 v3, v3, s%d" % T2)
        a.I("v_mul_u32_u24 v4, 52, v1")
        a.I("v_lshrrev_b32 v4, 8, v4")
        a.I("v_mul_u32_u24 v5, 5, v4")
        a.I("v_sub_u32 v1, v1, v5")
        a.I("v_mul_u32_u24 v4, 1280, v4")
        a.I("v_add_u32 v3, v3, v4")
        a.I("v_lshl_add_u32 v3, v1, 4, v3")
        a.I("v_add_u32 v%d, s%d, v3" % (VW+j, T0))
    a.I("s_lshl_b32 s%d, s%d, 10" % (T0, T5))
    for j in range(NW):
        a.I("s_add_u32 s%d, s%d, %d" % (S_M+NX+j, T0, XB + 4096*j))
    a.I("s_cmp_eq_u32 s%d, 3" % T5)
    a.I("s_cselect_b32 s%d, %d, s%d" % (S_M+NX+NW-1, SCR, S_M+NX+NW-1))
    a.I("s_cselect_b32 s%d, 0x7ffffff0, 0" % T2)
    a.I("v_or_b32 v%d, s%d, v%d" % (VW+NW-1, T2, VW+NW-1))
    issue_w(); advance()
    issue_x(); issue_w(); advance()
    stamp(a, 3)
    a.I("s_waitcnt vmcnt(11)")
    stamp(a, 4)
    vstamp(a, "1")
    a.I("s_barrier")
    vstamp(a, "2")
    issue_x(); issue_w(); advance()
    a.I("s_mov_b32 s%d, 0" % S_ST)
    a.L("AL_LOOP_%s" % tag)
    if PROF == 2:
        a.I("s_lshl_b32 s97, s%d, 1" % S_ST); a.I("s_add_u32 s96, s97, 3"); a.I("s_add_u32 s97, s97, 4"); a.I("s_add_u32 s95, s96, 20")
        vstamp(a, "s95")
    a.I("s_waitcnt vmcnt(11)")
    vstamp(a, "s96")
    a.I("s_barrier")
    vstamp(a, "s97")
    issue_x(); issue_w(); advance()
    a.I("s_add_u32 s%d, s%d, 1" % (S_ST, S_ST))
    a.I("s_cmp_lt_u32 s%d, 7" % S_ST)
    a.I("s_cbranch_scc1 AL_LOOP_%s" % tag)
    a.I("s_waitcnt vmcnt(11)")
    vstamp(a, "17")
    a.I("s_barrier")
    vstamp(a, "18")
    a.I("s_waitcnt vmcnt(0)")
    vstamp(a, "19")
    a.I("s_barrier")
    vstamp(a, "20")
    a.I("s_barrier")
    vstamp(a, "21")
    vstamp_flush(a)
    stamp(a, 5)

def a1_reads(S, ks):
    r = []
    vx = V_X0 if ks == 0 else V_X1
    vh = V_H0 if ks == 0 else V_H1
    for t in range(NT): r.append("ds_read_b128 %s, v%d offset:%d" % (v(xfrag(S,t),4), vx, t*2048))
    for name in TILES:
        for hb in range(2):
            if name == 'E1': base, off = V_E1, 0
            elif name == 'E2': base, off = V_E2, 0
            else: base, off = V_W, COL[name]
            r.append("ds_read_b64_tr_b16 %s, v%d offset:%d" % (v(wfrag(S,name)+2*hb,2), base, off + hb*240 + ks*7680))
    r.append("ds_read_b128 %s, v%d offset:0" % (v(xfrag(S,3),4), vh))
    for hb in range(2): r.append("ds_read_b64_tr_b16 %s, v%d offset:%d" % (v(hkf(S)+2*hb,2), V_HK, hb*240 + ks*7680))
    for hb in range(2): r.append("ds_read_b64_tr_b16 %s, v%d offset:%d" % (v(hvf(S)+2*hb,2), V_HV, hb*240 + ks*7680))
    return r

def a1_mfmas(S, first=False):
    m = []
    def mm(d, wf, xi, ori):
        c = "0" if first else v(d,4)
        if ori == 1: return "v_mfma_f32_16x16x32_bf16 %s, %s, %s, %s" % (v(d,4), v(wf,4), v(xfrag(S,xi),4), c)
        return "v_mfma_f32_16x16x32_bf16 %s, %s, %s, %s" % (v(d,4), v(xfrag(S,xi),4), v(wf,4), c)
    for name in TILES:
        for t in range(NT): m.append(mm(acc(t,name), wfrag(S,name), t, ORI[name]))
    m.append(mm(ACC_HK, hkf(S), 3, 1))
    m.append(mm(ACC_HV, hvf(S), 3, 2))
    return m

def interleave(a, ms, others):
    n = len(ms); k = len(others); idx = 0
    for i, m in enumerate(ms):
        a.I(m)
        upto = (k*(i+1) + n - 1)//n
        while idx < min(upto, k): a.I(others[idx]); idx += 1
    while idx < k: a.I(others[idx]); idx += 1

def pf(a):
    a.I("buffer_load_dword v%d, v%d, s[%d:%d], s%d offen" % (V_PFD, V_PF, R3, R3+3, S_PFO))
    a.I("s_add_u32 s%d, s%d, s%d" % (S_PFO, S_PFO, S_PFS))

def a_compute(a, tag):
    a.C("---- A compute waves 0..3")
    w = S_WAVE
    a.I("v_and_b32 v11, 15, v10")
    a.I("v_lshrrev_b32 v12, 4, v10")
    a.I("v_and_b32 v13, 7, v10")
    a.I("v_xor_b32 v13, v12, v13")
    a.I("v_lshlrev_b32 v13, 4, v13")
    a.I("v_lshl_add_u32 v%d, v11, 7, v13" % V_H0)
    a.I("v_xor_b32 v%d, 64, v%d" % (V_H1, V_H0))
    a.I("s_mul_i32 s%d, s%d, %d" % (T0, w, NT*2048))
    a.I("s_add_u32 s%d, s%d, 2048" % (T0, T0))
    a.I("v_add_u32 v%d, s%d, v%d" % (V_X0, T0, V_H0))
    a.I("v_add_u32 v%d, s%d, v%d" % (V_X1, T0, V_H1))
    a.I("v_bfe_u32 v13, v10, 2, 2")
    a.I("v_lshlrev_b32 v14, 3, v12")
    a.I("v_lshl_add_u32 v14, v13, 1, v14")
    a.I("v_mul_u32_u24 v14, 240, v14")
    a.I("v_add_u32 v14, %d, v14" % XB)
    a.I("v_and_b32 v13, 3, v10")
    a.I("v_lshl_add_u32 v%d, v13, 3, v14" % V_W)
    a.I("v_mul_u32_u24 v15, 40, v13")
    a.I("v_add3_u32 v%d, v15, v14, 32" % V_E1)
    a.I("v_and_b32 v13, 1, v13")
    a.I("v_mul_u32_u24 v15, 40, v13")
    a.I("v_add_u32 v15, 192, v15")
    a.I("v_add_u32 v%d, v15, v14" % V_E2)
    a.I("s_mul_i32 s%d, s%d, 40" % (T0, w))
    a.I("s_add_u32 s%d, s%d, 80" % (T1, T0))
    a.I("s_add_u32 s%d, s%d, 160" % (T2, T0))
    a.I("v_add_u32 v%d, s%d, v%d" % (V_HK, T1, V_W))
    a.I("v_add_u32 v%d, s%d, v%d" % (V_HV, T2, V_W))
    a.I("s_cmp_ge_u32 s%d, 2" % w)
    a.I("s_cbranch_scc0 AC_H_%s" % tag)
    a.I("v_mov_b32 v%d, v%d" % (V_HK, V_E1))
    a.I("v_mov_b32 v%d, v%d" % (V_HV, V_E2))
    a.L("AC_H_%s" % tag)
    a.I("s_mov_b32 s%d, 0xf149f2ca" % T0)
    a.I("v_lshlrev_b32 v13, 2, v12")
    a.I("v_sub_u32 v13, v11, v13")
    a.I("v_mov_b32 v15, s%d" % T0)
    for r in range(4):
        a.I("v_subrev_u32 v14, %d, v13" % r)
        a.I("v_and_b32 v11, 1, v14")
        a.I("v_cmp_eq_u32 vcc, 0, v11")
        a.I("v_cmp_le_i32 s[%d:%d], 0, v14" % (M0A, M0A+1))
        a.I("v_cmp_ge_i32 s[%d:%d], -2, v14" % (M0B, M0B+1))
        a.I("s_and_b64 s[%d:%d], s[%d:%d], vcc" % (M0A, M0A+1, M0A, M0A+1))
        a.I("s_and_b64 s[%d:%d], s[%d:%d], vcc" % (M0B, M0B+1, M0B, M0B+1))
        a.I("v_mov_b32 v%d, 0x3f803f80" % (ONES+r))
        a.I("v_cndmask_b32 v%d, v15, 0, s[%d:%d]" % (BC+r, M0A, M0A+1))
        a.I("v_cndmask_b32 v%d, v15, 0, s[%d:%d]" % (BP+r, M0B, M0B+1))
        a.I("v_cndmask_b32 v%d, v15, 0, s[%d:%d]" % (BP0+r, M0B, M0B+1))
    a.I("s_or_b32 s%d, s%d, s%d" % (T1, S_RB, w))
    a.I("s_cmp_eq_u32 s%d, 0" % T1)
    a.I("s_cbranch_scc0 AC_B_%s" % tag)
    for r in range(4): a.I("v_mov_b32 v%d, v15" % (BP0+r))
    a.L("AC_B_%s" % tag)
    if PFD:
        a.I("s_waitcnt lgkmcnt(0)")
        a.I("s_cmp_eq_u32 s%d, 1" % w)
        a.I("s_cbranch_scc1 PF_W_%s" % tag)
        srd(a, R3, P_X, SZ)
        a.I("s_and_b32 s%d, s2, 3" % T0); a.I("s_mul_i32 s%d, s%d, 22" % (T0, T0))
        a.I("s_add_u32 s%d, s%d, 21" % (T1, T0)); a.I("s_lshr_b32 s%d, s%d, 3" % (T0, T0)); a.I("s_lshr_b32 s%d, s%d, 3" % (T1, T1))
        a.I("s_add_u32 s%d, s%d, 1" % (T1, T1)); a.I("s_mul_i32 s%d, s%d, %d" % (T1, T1, 192*1280))
        a.I("s_mul_i32 s%d, s%d, 192" % (T0, T0)); a.I("s_sub_i32 s%d, s%d, 16" % (T0, T0))
        a.I("s_max_i32 s%d, s%d, 0" % (T0, T0))
        a.I("s_lshr_b32 s%d, s2, 3" % T2); a.I("s_mul_i32 s%d, s%d, 36" % (T2, T2)); a.I("s_add_i32 s%d, s%d, s%d" % (T0, T0, T2))
        a.I("s_mul_i32 s%d, s%d, 1280" % (T0, T0))
        a.I("s_sub_u32 s%d, s%d, 1" % (T2, w)); a.I("s_max_i32 s%d, s%d, 0" % (T2, T2)); a.I("s_lshl_b32 s%d, s%d, 14" % (T2, T2))
        a.I("s_add_u32 s%d, s%d, s%d" % (T2, T0, T2))
        a.I("v_lshlrev_b32 v11, 7, v10"); a.I("v_add_u32 v%d, s%d, v11" % (V_PF, T2))
        a.I("s_add_u32 s%d, s%d, %d" % (T0, T0, 36*1280)); a.I("s_min_u32 s%d, s%d, s%d" % (R3+2, T0, T1)); a.I("s_min_u32 s%d, s%d, %d" % (R3+2, R3+2, SZ))
        a.I("s_mov_b32 s%d, 0" % S_PFO); a.I("s_mov_b32 s%d, 8192" % S_PFS)
        pf(a); pf(a)
        a.I("s_mov_b32 s%d, 0" % (R3+2))
        a.I("s_branch PF_D_%s" % tag)
        a.L("PF_W_%s" % tag)
        srd(a, R3, P_W, 640*3840)
        a.I("s_lshr_b32 s%d, s2, 3" % T0); a.I("s_mul_i32 s%d, s%d, 44" % (T0, T0))
        a.I("v_add_u32 v11, s%d, v10" % T0)
        a.I("v_mul_u32_u24 v12, 4370, v11"); a.I("v_lshrrev_b32 v12, 16, v12")
        a.I("v_mul_u32_u24 v13, 15, v12"); a.I("v_sub_u32 v13, v11, v13")
        a.I("v_mul_u32_u24 v14, 52, v13"); a.I("v_lshrrev_b32 v14, 8, v14")
        a.I("v_mul_u32_u24 v11, 5, v14"); a.I("v_sub_u32 v13, v13, v11")
        a.I("v_mul_u32_u24 v12, 3840, v12"); a.I("v_mul_u32_u24 v14, 1280, v14")
        a.I("v_add_u32 v12, v12, v14"); a.I("v_lshl_add_u32 v12, v13, 7, v12")
        a.I("s_lshr_b32 s%d, s%d, 3" % (T0, S_HG)); a.I("s_mul_i32 s%d, s%d, 640" % (T0, T0))
        a.I("v_add_u32 v%d, s%d, v12" % (V_PF, T0))
        a.I("v_cmp_gt_u32 vcc, 44, v10")
        a.I("s_mov_b32 s%d, %d" % (S_PFS, 64*3840))
        a.I("v_mov_b32 v11, 0x7ffffff0")
        a.I("s_mov_b32 s%d, 0" % S_PFO)
        a.I("v_cndmask_b32 v%d, v11, v%d, vcc" % (V_PF, V_PF))
        for st in range(PFD): pf(a)
        a.L("PF_D_%s" % tag)
    a.I("s_mov_b32 s%d, %d" % (T0, SLOT))
    a.I("s_mov_b32 s%d, %d" % (T1, (-(NSLOT-1)*SLOT) & 0xffffffff))
    stamp(a, 2)
    a.I("s_barrier")
    stamp(a, 3)
    for r in a1_reads(SETA, 0): a.I(r)
    a.I("s_waitcnt lgkmcnt(0)")
    bases = (V_X0, V_X1, V_H0, V_H1, V_W, V_E1, V_E2, V_HK, V_HV)
    for st in range(NST):
        dl = T1 if (st+1) % NSLOT == 0 else T0
        upd = ["v_add_u32 v%d, s%d, v%d" % (r, dl, r) for r in bases] if st < NST-1 else []
        interleave(a, a1_mfmas(SETA, first=(st == 0)), a1_reads(SETB, 1) + upd)
        a.I("s_waitcnt lgkmcnt(0)")
        a.I("s_barrier")
        if PFD and st + PFD < NST: pf(a)
        interleave(a, a1_mfmas(SETB), a1_reads(SETA, 0) if st < NST-1 else [])
        if st < NST-1: a.I("s_waitcnt lgkmcnt(0)")
    stamp(a, 4)

def a_attention(a, tag):
    w = S_WAVE
    KN = 120; Kt = [128, 136, 144]
    V0B, V1B, VXB = 152, 160, 168
    Q = lambda t,h: 176 + 8*t + 4*h
    P = lambda u: 200 + 4*u
    TMP = 224
    H = 248
    SS = lambda u: 16 + 8*u
    M = lambda u: 88 + 2*u
    O = lambda u: 16 + 12*u
    def pk(d, s0):
        a.I("v_cvt_pk_bf16_f32 v%d, v%d, v%d" % (d, s0, s0+1))
        a.I("v_cvt_pk_bf16_f32 v%d, v%d, v%d" % (d+1, s0+2, s0+3))
    a.I("s_waitcnt vmcnt(0)")
    a.nop(6)
    for t in (NT-1,) + tuple(range(NT-1)):
        pk(Kt[t]+0, acc(t,'Km0')); pk(Kt[t]+4, acc(t,'Km1'))
        pk(V0B+2+2*t, acc(t,'Vm0')); pk(V1B+2+2*t, acc(t,'Vm1')); pk(VXB+2+2*t, acc(t,'E2'))
        pk(TMP+2*t, acc(t,'E1'))
        a.I("v_mov_b32 v%d, 0" % (Kt[t]+2)); a.I("v_mov_b32 v%d, 0" % (Kt[t]+3))
        pk(Q(t,0)+0, acc(t,'Qm0')); pk(Q(t,1)+2, acc(t,'Qm1'))
    pk(H, ACC_HK); pk(H+4, ACC_HV)
    a.I("v_mov_b32 v%d, v%d" % (H+6, H)); a.I("v_mov_b32 v%d, v%d" % (H+7, H+1))
    a.I("v_mov_b32 v%d, 0" % (H+2)); a.I("v_mov_b32 v%d, 0" % (H+3))
    a.I("v_lshlrev_b32 v11, 3, v10")
    for t in range(NT):
        for i in range(2): a.I("v_permlane32_swap_b32 v%d, v%d" % (TMP+2*t+i, Kt[t]+2+i))
    for i in range(2): a.I("v_permlane32_swap_b32 v%d, v%d" % (H+6+i, H+2+i))
    a.I("s_cmp_ge_u32 s%d, 2" % w)
    a.I("s_cselect_b64 s[%d:%d], -1, 0" % (M0A, M0A+1))
    a.I("s_add_u32 s%d, s%d, 1" % (T0, w)); a.I("s_mul_i32 s%d, s%d, 3072" % (T0, T0)); a.I("s_add_u32 s%d, s%d, %d" % (T0, T0, L_EX))
    a.I("v_add_u32 v12, s%d, v11" % T0)
    a.I("v_cndmask_b32 v%d, v%d, v%d, s[%d:%d]" % (H, H, H+2, M0A, M0A+1))
    a.I("v_cndmask_b32 v%d, v%d, v%d, s[%d:%d]" % (H+1, H+1, H+3, M0A, M0A+1))
    a.I("s_cmp_eq_u32 s%d, 1" % w); a.I("s_cselect_b32 s%d, 2, 0" % T1)
    a.I("s_cmp_eq_u32 s%d, 2" % w); a.I("s_cselect_b32 s%d, 1, s%d" % (T1, T1))
    a.I("s_lshl_b32 s%d, s%d, 9" % (T1, T1)); a.I("s_add_u32 s%d, s%d, %d" % (T1, T1, L_EX))
    a.I("s_add_u32 s%d, s%d, 3" % (T2, w)); a.I("s_lshl_b32 s%d, s%d, 9" % (T2, T2)); a.I("s_add_u32 s%d, s%d, %d" % (T2, T2, L_EX))
    a.I("v_add_u32 v13, s%d, v11" % T1)
    a.I("v_add_u32 v14, s%d, v11" % T2)
    lt = NT-1
    a.I("ds_write_b64 v12, %s offset:%d" % (v(Kt[lt]+0,2), 0*512))
    a.I("ds_write_b64 v12, %s offset:%d" % (v(Kt[lt]+2,2), 1*512))
    a.I("ds_write_b64 v12, %s offset:%d" % (v(Kt[lt]+4,2), 2*512))
    a.I("ds_write_b64 v12, %s offset:%d" % (v(V0B+2+2*lt,2), 3*512))
    a.I("ds_write_b64 v12, %s offset:%d" % (v(V1B+2+2*lt,2), 4*512))
    a.I("ds_write_b64 v12, %s offset:%d" % (v(VXB+2+2*lt,2), 5*512))
    a.I("s_cmp_eq_u32 s%d, 3" % w)
    a.I("s_cbranch_scc1 AT_NH_%s" % tag)
    a.I("ds_write_b64 v13, %s" % v(H,2))
    a.I("ds_write_b64 v14, %s" % v(H+4,2))
    a.L("AT_NH_%s" % tag)
    a.I("s_mov_b64 s[%d:%d], 0xffff" % (M0A, M0A+1))
    a.I("s_mov_b32 s%d, 0xffff0000" % M0B); a.I("s_mov_b32 s%d, 0" % (M0B+1))
    for t in range(NT):
        for i in range(2):
            a.I("v_cndmask_b32 v%d, 0, v%d, s[%d:%d]" % (Q(t,0)+2+i, TMP+2*t+i, M0A, M0A+1))
            a.I("v_cndmask_b32 v%d, 0, v%d, s[%d:%d]" % (Q(t,1)+0+i, TMP+2*t+i, M0B, M0B+1))
    a.I("s_mul_i32 s%d, s%d, 3072" % (T0, w)); a.I("s_add_u32 s%d, s%d, %d" % (T0, T0, L_EX))
    a.I("v_add_u32 v12, s%d, v11" % T0)
    a.I("s_waitcnt lgkmcnt(0)")
    a.I("s_barrier")
    a.I("ds_read_b64 %s, v12 offset:%d" % (v(KN+0,2), 0*512))
    a.I("ds_read_b64 %s, v12 offset:%d" % (v(KN+2,2), 1*512))
    a.I("ds_read_b64 %s, v12 offset:%d" % (v(KN+4,2), 2*512))
    a.I("ds_read_b64 %s, v12 offset:%d" % (v(V0B,2), 3*512))
    a.I("ds_read_b64 %s, v12 offset:%d" % (v(V1B,2), 4*512))
    a.I("ds_read_b64 %s, v12 offset:%d" % (v(VXB,2), 5*512))
    units = [(t,h) for t in range(NT) for h in range(2)]
    NU = len(units)
    Kop = lambda blk, h: v(blk + (0 if h == 0 else 2), 4)
    for u,(t,h) in enumerate(units):
        a.I("v_mfma_f32_16x16x32_bf16 %s, %s, %s, %s" % (v(SS(u)+4,4), Kop(Kt[t],h), v(Q(t,h),4), v(BC,4)))
    for u,(t,h) in enumerate(units):
        if t >= 1: a.I("v_mfma_f32_16x16x32_bf16 %s, %s, %s, %s" % (v(SS(u),4), Kop(Kt[t-1],h), v(Q(t,h),4), v(BP,4)))
    a.I("s_mul_i32 s%d, s%d, 3840" % (T0, w)); a.I("s_add_u32 s%d, s%d, %d" % (T0, T0, L_OB))
    a.I("v_and_b32 v11, 15, v10"); a.I("v_lshlrev_b32 v11, 4, v11"); a.I("v_add_u32 v11, s%d, v11" % T0)
    a.I("v_lshrrev_b32 v12, 4, v10")
    a.I("v_lshrrev_b32 v13, 1, v12"); a.I("v_and_b32 v14, 1, v12")
    a.I("v_lshlrev_b32 v13, 8, v13"); a.I("v_lshl_add_u32 v13, v14, 3, v13")
    a.I("v_add_u32 v1, v13, v11")
    a.I("v_add_u32 v13, 5, v12"); a.I("v_and_b32 v14, 1, v13"); a.I("v_lshrrev_b32 v13, 1, v13")
    a.I("v_lshlrev_b32 v13, 8, v13"); a.I("v_lshl_add_u32 v13, v14, 3, v13")
    a.I("v_add_u32 v2, v13, v11")
    a.I("v_mul_u32_u24 v13, 520, v12")
    a.I("v_add3_u32 v3, v13, v11, 0")
    a.I("v_add_u32 v3, 512, v3")
    a.I("s_waitcnt lgkmcnt(0)")
    for u,(t,h) in enumerate(units):
        if t == 0: a.I("v_mfma_f32_16x16x32_bf16 %s, %s, %s, %s" % (v(SS(u),4), Kop(KN,h), v(Q(t,h),4), v(BP0,4)))
    order = [u for u,(t,h) in enumerate(units) if t >= 1] + [u for u,(t,h) in enumerate(units) if t == 0]
    a.nop(2)
    for u in order:
        s0 = SS(u)
        a.I("v_max3_f32 v%d, v%d, v%d, v%d" % (M(u), s0+4, s0+5, s0+6))
        a.I("v_max3_f32 v%d, v%d, v%d, v%d" % (M(u)+1, s0+7, s0, s0+1))
    for u in order:
        s0 = SS(u)
        a.I("v_max3_f32 v%d, v%d, v%d, v%d" % (M(u), M(u), s0+2, s0+3))
    for u in order:
        a.I("v_max_f32 v%d, v%d, v%d" % (M(u), M(u), M(u)+1))
    for sw in ("v_permlane32_swap_b32", "v_permlane16_swap_b32"):
        for u in order: a.I("v_mov_b32 v%d, v%d" % (M(u)+1, M(u)))
        for u in order: a.I("%s v%d, v%d" % (sw, M(u), M(u)+1))
        for u in order: a.I("v_max_f32 v%d, v%d, v%d" % (M(u), M(u), M(u)+1))
    C = 0.22360679774997896 * 1.4426950408889634
    cbits = struct.unpack('<I', struct.pack('<f', C))[0]
    a.I("s_mov_b32 s%d, 0x%x" % (T1, cbits))
    for u in order: a.I("v_mul_f32 v%d, s%d, v%d" % (M(u), T1, M(u)))
    for u in order:
        for i in range(8): a.I("v_fma_f32 v%d, v%d, s%d, -v%d" % (SS(u)+i, SS(u)+i, T1, M(u)))
        for i in range(8): a.I("v_exp_f32 v%d, v%d" % (SS(u)+i, SS(u)+i))
    for u in order:
        for i in range(4): a.I("v_cvt_pk_bf16_f32 v%d, v%d, v%d" % (P(u)+i, SS(u)+2*i, SS(u)+2*i+1))
    a.nop(1)
    for u,(t,h) in enumerate(units):
        vb = (V0B if h == 0 else V1B) + 2*t
        a.I("v_mfma_f32_16x16x32_bf16 %s, %s, %s, 0" % (v(O(u)+8,4), v(ONES,4), v(P(u),4)))
        a.I("v_mfma_f32_16x16x32_bf16 %s, %s, %s, 0" % (v(O(u),4), v(vb,4), v(P(u),4)))
        a.I("v_mfma_f32_16x16x32_bf16 %s, %s, %s, 0" % (v(O(u)+4,4), v(VXB+2*t,4), v(P(u),4)))
    a.I("s_mul_i32 s%d, s%d, 12" % (T1, S_RB)); a.I("s_mul_i32 s%d, s%d, 3" % (T2, w)); a.I("s_add_u32 s%d, s%d, s%d" % (T1, T1, T2))
    a.I("s_mul_i32 s%d, s%d, 20480" % (T1, T1)); a.I("s_mul_i32 s%d, s%d, 1280" % (T2, S_HG)); a.I("s_add_u32 s%d, s%d, s%d" % (T1, T1, T2))
    a.I("s_movk_i32 s%d, 19200" % T2)
    for i in range(4):
        a.I("v_add_u32 v11, %d, v10" % (64*i))
        a.I("v_mul_u32_u24 v12, 820, v11"); a.I("v_lshrrev_b32 v12, 16, v12")
        a.I("v_mul_lo_u32 v12, v12, s%d" % T2)
        a.I("v_lshl_add_u32 v12, v11, 4, v12")
        a.I("v_add_u32 v%d, s%d, v12" % (4+i, T1))
    a.I("v_cmp_gt_u32 vcc, 48, v10")
    a.I("v_mov_b32 v11, 0x7ffffff0")
    a.I("s_nop 0")
    a.I("v_cndmask_b32 v7, v11, v7, vcc")
    a.I("v_lshlrev_b32 v8, 4, v10"); a.I("v_add_u32 v8, s%d, v8" % T0)
    for u in range(NU): a.I("v_rcp_f32 v%d, v%d" % (O(u)+8, O(u)+8))
    for u in range(NU):
        for i in range(8): a.I("v_mul_f32 v%d, v%d, v%d" % (O(u)+i, O(u)+i, O(u)+8))
        pk(P(u), O(u)); pk(P(u)+2, O(u)+4)
    for u,(t,h) in enumerate(units):
        a.I("ds_write_b64 v%d, %s offset:%d" % (1+h, v(P(u),2), t*1280))
    for t in range(NT):
        u0, u1 = 2*t, 2*t+1
        for i in range(2): a.I("v_cndmask_b32 v%d, v%d, v%d, s[%d:%d]" % (TMP+2*t+i, P(u1)+2+i, P(u0)+2+i, M0A, M0A+1))
    a.I("s_mov_b32 exec_hi, 0")
    for t in range(NT): a.I("ds_write_b64 v3, %s offset:%d" % (v(TMP+2*t,2), t*1280))
    a.I("s_mov_b64 exec, -1")
    srd(a, R2, P_WS, SZ, WS_O)
    a.I("s_waitcnt lgkmcnt(0)")
    for i in range(4): a.I("ds_read_b128 %s, v8 offset:%d" % (v(120+4*i,4), 1024*i))
    for i in range(4):
        a.I("s_waitcnt lgkmcnt(%d)" % (3-i))
        a.I("buffer_store_dwordx4 %s, v%d, s[%d:%d], 0 offen%s" % (v(120+4*i,4), 4+i, R2, R2+3, SC1))
    stamp(a, 5)

def load_seed(a):
    a.I("s_add_u32 s%d, s%d, 0x%x" % (T2, P_WS, WS_SEED)); a.I("s_addc_u32 s%d, s%d, 0" % (T3, P_WS+1))
    a.I("s_load_dword s%d, s[%d:%d], 0" % (S_NONCE, T2, T3))
def make_nonce(a):
    a.I("s_mul_i32 s%d, s%d, 0x9e3779b1" % (S_NONCE, S_NONCE))
    a.I("s_add_u32 s%d, s%d, 0x85ebca6b" % (S_NONCE, S_NONCE))
def flag_store(a, sidx):
    a.I("s_lshl_b32 s%d, s%d, 7" % (T0, sidx))
    a.I("s_mov_b64 exec, 1")
    a.I("v_mov_b32 v1, s%d" % T0); a.I("v_mov_b32 v2, s%d" % S_NONCE)
    a.I("buffer_store_dword v2, v1, s[%d:%d], 0 offen sc1" % (R4, R4+3))
    a.I("s_mov_b64 exec, -1")
def poll(a, tag, nlanes):
    a.I("s_mov_b64 exec, 0x%x" % ((1 << nlanes) - 1) if nlanes < 32 else "s_mov_b32 exec_lo, -1\ns_mov_b32 exec_hi, 0" if nlanes == 32 else "s_mov_b64 exec, -1")
    a.I("s_mov_b32 s%d, 0" % T0)
    a.L("POLL_%s" % tag)
    a.I("buffer_load_dword v2, v1, s[%d:%d], 0 offen sc1" % (R4, R4+3))
    a.I("s_add_u32 s%d, s%d, 1" % (T0, T0))
    a.I("s_waitcnt vmcnt(0)")
    a.I("v_cmp_ne_u32 vcc, s%d, v2" % S_NONCE)
    a.I("s_cmp_gt_u32 s%d, 20000" % T0)
    a.I("s_cbranch_scc1 POLLED_%s" % tag)
    a.I("s_cmp_eq_u64 vcc, 0")
    a.I("s_cbranch_scc1 POLLED_%s" % tag)
    a.I("s_sleep 1")
    a.I("s_branch POLL_%s" % tag)
    a.L("POLLED_%s" % tag)
    a.I("s_mov_b64 exec, -1")

def a2_wo_dma(a):
    a.I("s_sub_u32 s%d, s%d, 4" % (T5, S_WAVE))
    srd(a, R0, P_WO, 640*1280)
    a.I("v_lshrrev_b32 v1, 3, v10")
    a.I("v_bfe_u32 v2, v1, 1, 1")
    a.I("s_and_b32 s%d, s%d, 1" % (T0, T5)); a.I("s_lshl_b32 s%d, s%d, 1" % (T0, T0))
    a.I("v_or_b32 v2, s%d, v2" % T0)
    a.I("v_lshlrev_b32 v2, 1, v2")
    a.I("v_and_b32 v3, 7, v10")
    a.I("v_xor_b32 v2, v2, v3")
    a.I("s_lshl_b32 s%d, s%d, 3" % (T0, T5))
    a.I("v_add_u32 v1, s%d, v1" % T0)
    a.I("v_mul_u32_u24 v1, 1280, v1")
    a.I("v_lshl_add_u32 v1, v2, 4, v1")
    a.I("s_lshl_b32 s%d, s%d, 7" % (T0, S_CB))
    a.I("v_add_u32 v1, s%d, v1" % T0)
    a.I("s_lshl_b32 s%d, s%d, 10" % (T1, T5))
    a.I("s_mov_b32 s%d, 0" % T2)
    for j in range(20):
        a.I("s_add_u32 m0, s%d, %d" % (T1, L_WO + 4096*j))
        a.I("s_nop 0")
        a.I("buffer_load_dwordx4 v1, s[%d:%d], s%d offen lds" % (R0, R0+3, T2))
        if j < 19: a.I("s_add_u32 s%d, s%d, 40960" % (T2, T2))

def a2_compute(a):
    OF = lambda ks, t: 16 + (ks*2 + t)*4
    AC = lambda t, j: 176 + (t*4 + j)*4
    WF = lambda S, j: 208 + S*16 + j*4
    w = S_WAVE
    srd(a, R2, P_WS, SZ, WS_O)
    a.I("s_lshl_b32 s%d, s%d, 3" % (T0, S_RB2)); a.I("s_lshl_b32 s%d, s%d, 1" % (T1, w)); a.I("s_add_u32 s%d, s%d, s%d" % (T0, T0, T1))
    a.I("s_mul_i32 s%d, s%d, 20480" % (T0, T0))
    a.I("v_lshlrev_b32 v1, 4, v10"); a.I("v_add_u32 v1, s%d, v1" % T0)
    a.I("v_add_u32 v2, 20480, v1")
    for k4 in range(5):
        a.I("s_mov_b32 s%d, %d" % (T1, 4096*k4))
        for kk in range(4):
            for t in range(2):
                a.I("buffer_load_dwordx4 %s, v%d, s[%d:%d], s%d offen offset:%d%s" % (v(OF(4*k4+kk,t),4), 1+t, R2, R2+3, T1, 1024*kk, SC1))
    a.I("v_lshrrev_b32 v11, 4, v10")
    a.I("v_bfe_u32 v12, v10, 2, 2")
    a.I("v_lshl_add_u32 v13, v11, 3, v12")
    a.I("v_lshlrev_b32 v13, 7, v13")
    a.I("v_lshrrev_b32 v14, 1, v12")
    a.I("v_and_b32 v15, 1, v11")
    a.I("v_lshl_add_u32 v14, v15, 1, v14")
    a.I("v_lshlrev_b32 v14, 1, v14")
    a.I("v_bfe_u32 v15, v10, 1, 1")
    a.I("v_lshl_add_u32 v13, v15, 4, v13")
    a.I("v_and_b32 v15, 1, v10")
    a.I("v_lshl_add_u32 v13, v15, 3, v13")
    for j in range(4):
        a.I("v_xor_b32 v15, %d, v14" % (2*j))
        a.I("v_lshl_add_u32 v%d, v15, 4, v13" % (3+j))
    def reads(S, ks):
        r = []
        o = ks*4096 - (40960 if ks >= 10 else 0)
        for j in range(4):
            for hb in range(2):
                r.append("ds_read_b64_tr_b16 %s, v%d offset:%d" % (v(WF(S,j)+2*hb,2), 3+j, L_WO + o + hb*512))
        return r
    for r in reads(0, 0): a.I(r)
    srd(a, R3, P_OUT, 2048*2560)
    a.I("s_lshl_b32 s%d, s%d, 7" % (T0, S_RB2)); a.I("s_lshl_b32 s%d, s%d, 5" % (T1, w)); a.I("s_add_u32 s%d, s%d, s%d" % (T0, T0, T1))
    a.I("v_and_b32 v12, 15, v10"); a.I("v_add_u32 v12, s%d, v12" % T0)
    a.I("v_mul_u32_u24 v12, 2560, v12")
    a.I("v_and_b32 v13, 1, v11"); a.I("v_lshlrev_b32 v13, 5, v13")
    a.I("v_lshrrev_b32 v14, 1, v11"); a.I("v_lshl_add_u32 v13, v14, 4, v13")
    a.I("s_lshl_b32 s%d, s%d, 7" % (T0, S_CB))
    a.I("v_add3_u32 v7, v12, v13, s%d" % T0)
    a.I("v_add_u32 v8, 40960, v7")
    a.I("s_mov_b32 s%d, 40960" % T1)
    for ks in range(20):
        S = ks & 1
        a.I("s_waitcnt vmcnt(%d) lgkmcnt(0)" % (38 - 2*ks))
        ms = []
        for j in range(4):
            for t in range(2):
                c = "0" if ks == 0 else v(AC(t,j),4)
                ms.append("v_mfma_f32_16x16x32_bf16 %s, %s, %s, %s" % (v(AC(t,j),4), v(WF(S,j),4), v(OF(ks,t),4), c))
        oth = []
        if ks == 9: oth += ["v_add_u32 v%d, s%d, v%d" % (3+j, T1, 3+j) for j in range(4)]
        if ks < 19: oth += reads(1-S, ks+1)
        interleave(a, ms, oth)
    a.nop(7)
    PK = 16
    for t in range(2):
        for p in range(2):
            d = PK + (t*2+p)*4
            for hh in range(2):
                s0 = AC(t, 2*p+hh)
                a.I("v_cvt_pk_bf16_f32 v%d, v%d, v%d" % (d+2*hh, s0, s0+1))
                a.I("v_cvt_pk_bf16_f32 v%d, v%d, v%d" % (d+2*hh+1, s0+2, s0+3))
    a.nop(1)
    for t in range(2):
        for p in range(2):
            d = PK + (t*2+p)*4
            a.I("v_permlane16_swap_b32 v%d, v%d" % (d, d+2))
            a.I("v_permlane16_swap_b32 v%d, v%d" % (d+1, d+3))
    for t in range(2):
        for p in range(2):
            d = PK + (t*2+p)*4
            a.I("buffer_store_dwordx4 %s, v%d, s[%d:%d], 0 offen offset:%d" % (v(d,4), 7+t, R3, R3+3, 64*p))

H_SZ = 8320; U_SZ = 4608
L_H = 0; L_U = 8*H_SZ; L_Q = L_U + 8*U_SZ; L_BEND = L_Q + 32768
L_T = L_U
L_Y = 0; Y_P = 4160
S_B = S_IDX

def b_ids(a):
    a.I("s_mul_i32 s%d, s%d, 10" % (T0, T0))
    a.I("s_add_u32 s%d, s%d, s%d" % (S_B, T0, T1))
    a.I("s_sub_u32 s%d, s%d, 22" % (S_B, S_B))

def b1_loads(a):
    KR = lambda i: 16 + 4*i; VR = lambda j: 44 + 4*j; WR = 60
    a.I("v_and_b32 v11, 255, v0")
    a.I("v_lshrrev_b32 v12, 3, v11")
    a.I("v_and_b32 v13, 7, v11")
    a.I("s_lshr_b32 s%d, s%d, 3" % (S_RB2, S_B))
    a.I("s_and_b32 s%d, s%d, 7" % (T0, S_B)); a.I("s_lshl_b32 s%d, s%d, 1" % (T0, T0)); a.I("s_lshr_b32 s%d, s%d, 2" % (T1, S_WAVE))
    a.I("s_add_u32 s%d, s%d, s%d" % (S_RB, T0, T1))
    a.I("s_lshl_b32 s%d, s%d, 7" % (T0, S_RB))
    a.I("v_lshl_add_u32 v14, v12, 2, s%d" % T0)
    a.I("v_mul_u32_u24 v14, 1280, v14")
    a.I("s_lshl_b32 s%d, s%d, 7" % (T0, S_RB2))
    a.I("v_lshl_add_u32 v14, v13, 4, v14")
    a.I("v_add_u32 v1, s%d, v14" % T0)
    a.I("v_subrev_u32 v2, 1280, v1"); a.I("v_subrev_u32 v3, 2560, v1"); a.I("v_subrev_u32 v4, 3840, v1")
    a.I("s_lshl_b32 s%d, s%d, 9" % (T0, S_RB2))
    a.I("v_lshl_add_u32 v5, v13, 6, s%d" % T0)
    a.I("s_waitcnt lgkmcnt(0)")
    srd(a, R0, P_K, SZ); srd(a, R1, P_V, SZ); srd(a, R2, P_SH, 640*8)
    for i in range(4): a.I("buffer_load_dwordx4 %s, v5, s[%d:%d], 0 offen offset:%d" % (v(WR+4*i,4), R2, R2+3, 16*i))
    for i in range(3): a.I("buffer_load_dwordx4 %s, v%d, s[%d:%d], 0 offen" % (v(KR(i),4), 4-i, R0, R0+3))
    for i in range(4): a.I("buffer_load_dwordx4 %s, v1, s[%d:%d], 0 offen offset:%d" % (v(KR(3+i),4), R0, R0+3, 1280*i))
    for j in range(4): a.I("buffer_load_dwordx4 %s, v1, s[%d:%d], 0 offen offset:%d" % (v(VR(j),4), R1, R1+3, 1280*j))

def b_h_loads(a):
    a.I("s_lshl_b32 s%d, s%d, 3" % (T0, S_B)); a.I("s_add_u32 s%d, s%d, s%d" % (T0, T0, S_WAVE))
    a.I("s_lshl_b32 s%d, s%d, 12" % (T1, T0))
    a.I("s_add_u32 s%d, s%d, s%d" % (R3, P_H, T1)); a.I("s_addc_u32 s%d, s%d, 0" % (R3+1, P_H+1))
    a.I("s_and_b32 s%d, s%d, 0xffff" % (R3+1, R3+1)); a.I("s_mov_b32 s%d, 4096" % (R3+2)); a.I("s_mov_b32 s%d, 0x20000" % (R3+3))
    a.I("v_lshlrev_b32 v6, 4, v10")
    for i in range(4): a.I("buffer_load_dwordx4 %s, v6, s[%d:%d], 0 offen offset:%d" % (v(128+4*i,4), R3, R3+3, 1024*i))
    for i in range(4): a.I("buffer_load_dwordx4 %s, v6, s[%d:%d], 0 offen offset:%d" % (v(144+4*i,4), R3, R3+3, 1024*i+4))
    a.I("s_and_b32 s%d, s%d, 0xfffffffe" % (T1, T0)); a.I("s_lshl_b32 s%d, s%d, 1" % (T1, T1))
    a.I("s_add_u32 s%d, s%d, s%d" % (T2, P_D, T1)); a.I("s_addc_u32 s%d, s%d, 0" % (T3, P_D+1))
    a.I("s_load_dword s%d, s[%d:%d], 0" % (S_CB, T2, T3))

def b_q_dma(a):
    srd(a, R1, P_Q, SZ)
    a.I("s_lshl_b32 s%d, s%d, 8" % (T0, S_WAVE))
    a.I("v_add_u32 v7, s%d, v10" % T0)
    a.I("v_mul_u32_u24 v7, 1280, v7")
    a.I("s_lshl_b32 s%d, s%d, 4" % (T1, S_B))
    a.I("v_add_u32 v7, s%d, v7" % T1)
    a.I("s_lshl_b32 s%d, s%d, 12" % (T0, S_WAVE))
    a.I("s_mov_b32 s%d, 0" % T1)
    for i in range(4):
        a.I("s_add_u32 m0, s%d, %d" % (T0, L_Q + 1024*i))
        a.I("s_nop 0")
        a.I("buffer_load_dwordx4 v7, s[%d:%d], s%d offen lds" % (R1, R1+3, T1))
        if i < 3: a.I("s_add_u32 s%d, s%d, 81920" % (T1, T1))

def b1_compute(a):
    KR = lambda i: 16 + 4*i; VR = lambda j: 44 + 4*j; WR = 60
    Pq = 80; U = 88; OUTR = 96
    a.I("s_mov_b32 s%d, 0x05040100" % T0); a.I("s_mov_b32 s%d, 0x07060302" % T1)
    for c in range(8):
        rc, hc = c >> 1, c & 1
        sel = T0 if hc == 0 else T1
        for i in range(1, 7):
            a.I("v_perm_b32 v%d, v%d, v%d, s%d" % (Pq+i-1, KR(i-1)+rc, KR(i)+rc, sel))
        for j in range(4):
            a.I("v_dot2_f32_bf16 v%d, v%d, v%d, 0" % (U+j, Pq+(j+3-2)-1, WR+2*c+1))
        for j in range(4):
            a.I("v_dot2_f32_bf16 v%d, v%d, v%d, v%d" % (U+j, Pq+(j+3)-1, WR+2*c, U+j))
        for j in range(4):
            if hc == 0: a.I("v_lshlrev_b32 v%d, 16, v%d" % (92+j, VR(j)+rc))
            else: a.I("v_and_b32 v%d, 0xffff0000, v%d" % (92+j, VR(j)+rc))
        for j in range(4): a.I("v_mul_f32 v%d, v%d, v%d" % (U+j, U+j, 92+j))
        a.I("v_cvt_pk_bf16_f32 v%d, v%d, v%d" % (OUTR+2*c, U+3, U+2))
        a.I("v_cvt_pk_bf16_f32 v%d, v%d, v%d" % (OUTR+2*c+1, U+1, U))
    a.I("s_lshr_b32 s%d, s%d, 2" % (T2, S_WAVE)); a.I("s_lshl_b32 s%d, s%d, 14" % (T2, T2)); a.I("s_add_u32 s%d, s%d, %d" % (T2, T2, L_T))
    a.I("v_sub_u32 v14, 31, v12"); a.I("v_lshlrev_b32 v15, 1, v13"); a.I("v_xor_b32 v14, v14, v15")
    a.I("v_lshlrev_b32 v14, 3, v14"); a.I("v_lshl_add_u32 v14, v13, 11, v14"); a.I("v_add_u32 v14, s%d, v14" % T2)
    for c in range(8): a.I("ds_write_b64 v14, %s offset:%d" % (v(OUTR+2*c,2), 256*c))
    a.I("v_lshrrev_b32 v1, 4, v11")
    a.I("v_and_b32 v2, 15, v11")
    a.I("v_lshrrev_b32 v3, 7, v11")
    for i in range(4):
        a.I("v_add_u32 v4, %d, v3" % (2*i)); a.I("v_xor_b32 v4, v4, v2"); a.I("v_lshlrev_b32 v4, 4, v4")
        a.I("v_lshl_add_u32 v4, v1, 8, v4"); a.I("v_add_u32 v%d, s%d, v4" % (80+i, T2))
    srd(a, R2, P_WS, SZ, WS_UT)
    a.I("s_lshl_b32 s%d, s%d, 18" % (T0, S_RB2))
    a.I("s_lshl_b32 s%d, s%d, 8" % (T1, S_RB)); a.I("s_sub_u32 s%d, s%d, s%d" % (T0, T0, T1)); a.I("s_add_u32 s%d, s%d, 3840" % (T0, T0))
    a.I("v_lshlrev_b32 v5, 12, v1"); a.I("v_lshl_add_u32 v5, v2, 4, v5"); a.I("v_add_u32 v5, s%d, v5" % T0)
    a.I("s_waitcnt lgkmcnt(0)")
    a.I("s_barrier")
    for i in range(4): a.I("ds_read_b128 %s, v%d offset:%d" % (v(96+4*i,4), 80+i, 4096*i))
    a.I("s_mov_b32 s%d, 0" % T1)
    for i in range(4):
        a.I("s_waitcnt lgkmcnt(%d)" % (3-i))
        a.I("buffer_store_dwordx4 %s, v5, s[%d:%d], s%d offen%s" % (v(96+4*i,4), R2, R2+3, T1, SC1))
        if i < 3: a.I("s_add_u32 s%d, s%d, 65536" % (T1, T1))

def b_h_stage(a):
    a.I("s_mul_i32 s%d, s%d, %d" % (T0, S_WAVE, H_SZ))
    a.I("v_lshlrev_b32 v6, 4, v10"); a.I("v_add_u32 v6, s%d, v6" % T0)
    a.I("v_readfirstlane_b32 s%d, v128" % T1)
    for i in range(16): a.I("v_alignbit_b32 v%d, v%d, v%d, 16" % (144+i, 144+i, 128+i))
    for i in range(4):
        a.I("ds_write_b128 v6, %s offset:%d" % (v(128+4*i,4), L_H + 32 + 1024*i))
        a.I("ds_write_b128 v6, %s offset:%d" % (v(144+4*i,4), L_H + 4160 + 32 + 1024*i))
    a.I("s_lshl_b32 s%d, s%d, 16" % (T1, T1))
    a.I("v_lshlrev_b32 v7, 2, v10"); a.I("v_add_u32 v7, s%d, v7" % T0)
    a.I("v_mov_b32 v8, 0"); a.I("v_mov_b32 v9, s%d" % T1)
    a.I("v_cmp_eq_u32 vcc, 7, v10")
    a.I("s_mov_b64 exec, 0xff")
    a.I("s_nop 0")
    a.I("v_cndmask_b32 v9, v8, v9, vcc")
    a.I("ds_write_b32 v7, v8 offset:%d" % L_H)
    a.I("ds_write_b32 v7, v9 offset:%d" % (L_H + 4160))
    a.I("s_mov_b64 exec, -1")

def b_u_stage(a):
    srd(a, R2, P_WS, SZ, WS_UT)
    a.I("s_lshl_b32 s%d, s%d, 3" % (T0, S_B)); a.I("s_add_u32 s%d, s%d, s%d" % (T0, T0, S_WAVE)); a.I("s_lshl_b32 s%d, s%d, 12" % (T0, T0))
    a.I("v_lshlrev_b32 v6, 4, v10"); a.I("v_add_u32 v7, s%d, v6" % T0)
    for i in range(4): a.I("buffer_load_dwordx4 %s, v7, s[%d:%d], 0 offen offset:%d%s" % (v(128+4*i,4), R2, R2+3, 1024*i, SC1))
    a.I("s_mul_i32 s%d, s%d, %d" % (T0, S_WAVE, U_SZ)); a.I("s_add_u32 s%d, s%d, %d" % (T0, T0, L_U))
    a.I("v_add_u32 v6, s%d, v6" % T0)
    for i in range(4): a.I("v_mov_b32 v%d, 0" % (144+i))
    a.I("s_mov_b32 exec_hi, 0")
    a.I("ds_write_b128 v6, v[144:147] offset:4096")
    a.I("s_mov_b64 exec, -1")
    for i in range(4):
        a.I("s_waitcnt vmcnt(%d)" % (3-i))
        a.I("ds_write_b128 v6, %s offset:%d" % (v(128+4*i,4), 1024*i))

def b2_main(a):
    AF = lambda S, x: 16 + S*64 + x*4
    BF = lambda S, x: 48 + S*64 + x*4
    AC = lambda t: 144 + 4*t
    VA = 1; VB = 5
    a.I("v_and_b32 v11, 15, v10"); a.I("v_lshrrev_b32 v12, 4, v10")
    a.I("v_and_b32 v13, 1, v11")
    a.I("v_lshlrev_b32 v14, 1, v11")
    a.I("v_cmp_eq_u32 vcc, 1, v13")
    a.I("v_add_u32 v15, 2, v14"); a.I("v_add_u32 v14, 4160, v14")
    a.I("v_cndmask_b32 v14, v14, v15, vcc")
    a.I("v_lshl_add_u32 v14, v12, 4, v14")
    a.I("s_mul_i32 s%d, s%d, %d" % (T0, S_WAVE, H_SZ))
    a.I("v_add_u32 v%d, s%d, v14" % (VA, T0))
    for p in range(1, 4): a.I("v_add_u32 v%d, %d, v%d" % (VA+p, 1024*p, VA))
    a.I("s_mul_i32 s%d, s%d, %d" % (T0, S_WAVE, U_SZ)); a.I("s_add_u32 s%d, s%d, %d" % (T0, T0, L_U + 480))
    a.I("v_lshlrev_b32 v14, 5, v11"); a.I("v_lshlrev_b32 v15, 4, v12"); a.I("v_sub_u32 v14, v15, v14")
    a.I("v_add_u32 v%d, s%d, v14" % (VB, T0))
    def reads(S, b):
        r = []
        for x in range(8):
            o = (x & 1)*128 + 16*b
            r.append("ds_read_b128 %s, v%d offset:%d" % (v(BF(S,x),4), VB, 512*(7-x) + 64*b))
            r.append("ds_read2_b32 %s, v%d offset0:%d offset1:%d" % (v(AF(S,x),2), VA + (x>>1), o, o+1))
            r.append("ds_read2_b32 %s, v%d offset0:%d offset1:%d" % (v(AF(S,x)+2,2), VA + (x>>1), o+2, o+3))
        return r
    for r in reads(0, 0): a.I(r)
    for b in range(8):
        S = b & 1
        a.I("s_waitcnt lgkmcnt(0)")
        ms = []
        for aa in range(8):
            for t in range(aa, 8):
                c = "0" if (b == 0 and aa == 0) else v(AC(t),4)
                ms.append("v_mfma_f32_16x16x32_bf16 %s, %s, %s, %s" % (v(AC(t),4), v(AF(S,aa),4), v(BF(S,t-aa),4), c))
        interleave(a, ms, reads(1-S, b+1) if b < 7 else [])

def b2_epilogue(a):
    AC = lambda t: 144 + 4*t
    a.I("s_mul_i32 s%d, s%d, %d" % (T0, S_WAVE, U_SZ)); a.I("s_add_u32 s%d, s%d, %d" % (T0, T0, L_U + 504))
    a.I("v_lshlrev_b32 v14, 5, v11"); a.I("v_lshl_add_u32 v14, v12, 3, v14"); a.I("v_sub_u32 v14, s%d, v14" % T0)
    for t in range(8): a.I("ds_read_b64 %s, v14 offset:%d" % (v(16+2*t,2), 512*(7-t)))
    a.I("s_and_b32 s%d, s%d, 1" % (T0, S_WAVE))
    a.I("s_cmp_eq_u32 s%d, 0" % T0)
    a.I("s_cbranch_scc1 B_DLO")
    a.I("s_and_b32 s%d, s%d, 0xffff0000" % (S_CB, S_CB))
    a.I("s_branch B_DD")
    a.L("B_DLO")
    a.I("s_lshl_b32 s%d, s%d, 16" % (S_CB, S_CB))
    a.L("B_DD")
    a.I("v_lshl_add_u32 v13, v11, 2, v12"); a.I("v_lshrrev_b32 v15, 2, v11"); a.I("v_xor_b32 v13, v13, v15")
    a.I("s_mul_i32 s%d, s%d, %d" % (T0, S_WAVE, Y_P))
    a.I("v_lshlrev_b32 v13, 3, v13"); a.I("v_add_u32 v13, s%d, v13" % T0)
    a.I("s_barrier")
    a.I("s_waitcnt lgkmcnt(0)")
    for t in range(8):
        d0, d1 = 16+2*t, 16+2*t+1
        a.I("v_and_b32 v32, 0xffff0000, v%d" % d1); a.I("v_lshlrev_b32 v33, 16, v%d" % d1)
        a.I("v_and_b32 v34, 0xffff0000, v%d" % d0); a.I("v_lshlrev_b32 v35, 16, v%d" % d0)
        for r in range(4): a.I("v_fma_f32 v%d, v%d, s%d, v%d" % (32+r, 32+r, S_CB, AC(t)+r))
        a.I("v_cvt_pk_bf16_f32 v%d, v32, v33" % (40+2*t)); a.I("v_cvt_pk_bf16_f32 v%d, v34, v35" % (40+2*t+1))
        a.I("ds_write_b64 v13, %s offset:%d" % (v(40+2*t,2), L_Y + 512*t))
    a.I("v_bfe_u32 v1, v10, 2, 2"); a.I("v_mul_u32_u24 v1, %d, v1" % Y_P)
    a.I("s_lshl_b32 s%d, s%d, 9" % (T0, S_WAVE))
    a.I("v_lshl_add_u32 v1, v12, 5, v1"); a.I("v_add_u32 v1, s%d, v1" % T0)
    a.I("v_and_b32 v2, 3, v10")
    for it in range(4):
        a.I("v_xor_b32 v3, %d, v2" % it); a.I("v_lshl_add_u32 v%d, v3, 3, v1" % (4+it))
    a.I("s_lshl_b32 s%d, s%d, 12" % (T0, S_WAVE)); a.I("s_add_u32 s%d, s%d, %d" % (T0, T0, L_Q))
    a.I("v_lshlrev_b32 v8, 4, v10"); a.I("v_add_u32 v8, s%d, v8" % T0)
    srd(a, R3, P_OUT, 2048*2560)
    a.I("s_lshl_b32 s%d, s%d, 8" % (T0, S_WAVE)); a.I("v_add_u32 v9, s%d, v10" % T0)
    a.I("v_mul_u32_u24 v9, 2560, v9"); a.I("s_lshl_b32 s%d, s%d, 4" % (T0, S_B)); a.I("s_add_u32 s%d, s%d, 1280" % (T0, T0))
    a.I("v_add_u32 v9, s%d, v9" % T0)
    a.I("s_waitcnt vmcnt(0) lgkmcnt(0)")
    a.I("s_barrier")
    for it in range(4):
        d = 64 + 8*it
        a.I("ds_read_b64_tr_b16 %s, v%d offset:%d" % (v(d,2), 4+it, L_Y + 128*it))
        a.I("ds_read_b64_tr_b16 %s, v%d offset:%d" % (v(d+2,2), 4+it, L_Y + 128*it + 4*Y_P))
        a.I("ds_read_b128 %s, v8 offset:%d" % (v(d+4,4), 1024*it))
    a.I("s_mov_b32 s%d, 0" % T1)
    for it in range(4):
        d = 64 + 8*it
        a.I("s_waitcnt lgkmcnt(%d)" % (9 - 3*it))
        for i in range(4):
            a.I("v_lshlrev_b32 v32, 16, v%d" % (d+i)); a.I("v_and_b32 v33, 0xffff0000, v%d" % (d+i))
            a.I("v_lshlrev_b32 v34, 16, v%d" % (d+4+i)); a.I("v_and_b32 v35, 0xffff0000, v%d" % (d+4+i))
            a.I("v_mul_f32 v32, v32, v34"); a.I("v_mul_f32 v33, v33, v35")
            a.I("v_cvt_pk_bf16_f32 v%d, v32, v33" % (100+4*it+i))
        a.I("buffer_store_dwordx4 %s, v9, s[%d:%d], s%d offen" % (v(100+4*it,4), R3, R3+3, T1))
        if it < 3: a.I("s_add_u32 s%d, s%d, %d" % (T1, T1, 64*2560))

def flag_srd(a): srd(a, R4, P_WS, 256*128, WS_FLAG)

def end(a, phase, n=8, fused=False):
    if PROF:
        if fused:
            a.I("s_waitcnt vmcnt(0)"); stamp(a, 10); rstamp(a, 7); stamp_flush(a, 11, phase)
        else:
            a.I("s_waitcnt vmcnt(0)"); stamp(a, 6); rstamp(a, 7); stamp_flush(a, n, phase)
    a.I("s_endpgm")

def gen_phase1(a, tag, fused):
    pass

def build():
    a = Asm()
    LDS = max(NSLOT*SLOT, L_BEND)
    if SPLIT:
        kernel_begin(a, "phase1_kernel")
        prologue(a, "1")
        a.I("s_cmp_ge_u32 s%d, 4" % S_WAVE); a.I("s_cbranch_scc1 A_LOADER1")
        a_compute(a, "1"); a_attention(a, "1"); end(a, 0)
        a.L("A_LOADER1"); a_loader(a, "1"); a.I("s_barrier"); end(a, 0)
        a.L("ROLE_B_1"); b_ids(a); b1_loads(a); a.I("s_waitcnt vmcnt(0)"); stamp(a, 2); b1_compute(a); stamp(a, 3); end(a, 0)
        a.L("END_1"); a.I("s_endpgm")
        kernel_begin(a, "phase2_kernel")
        prologue(a, "2")
        a.I("s_cmp_ge_u32 s%d, 160" % S_IDX); a.I("s_cbranch_scc1 END_2")
        a.I("s_waitcnt lgkmcnt(0)")
        a.I("s_cmp_ge_u32 s%d, 4" % S_WAVE); a.I("s_cbranch_scc1 A_LOADER2")
        a.I("s_barrier"); stamp(a, 2); a2_compute(a); stamp(a, 3); end(a, 1)
        a.L("A_LOADER2"); a2_wo_dma(a); a.I("s_waitcnt vmcnt(0)"); a.I("s_barrier"); end(a, 1)
        a.L("ROLE_B_2"); b_ids(a); a.I("s_waitcnt lgkmcnt(0)")
        b_h_loads(a); b_q_dma(a); a.I("s_waitcnt vmcnt(4)"); b_h_stage(a); b_u_stage(a)
        a.I("s_waitcnt lgkmcnt(0)"); a.I("s_barrier"); stamp(a, 2)
        b2_main(a); stamp(a, 3); b2_epilogue(a); stamp(a, 4); end(a, 1)
        a.L("END_2"); a.I("s_endpgm")
        names = ["phase1_kernel", "phase2_kernel"]
        txt = header([(n, 256, 512, LDS) for n in names])
    else:
        name = NAME + "_kernel"
        kernel_begin(a, name)
        prologue(a, "1")
        a.I("s_cmp_ge_u32 s%d, 4" % S_WAVE); a.I("s_cbranch_scc1 A_LOADER")
        a_compute(a, "1"); a_attention(a, "1")
        a.I("s_waitcnt vmcnt(0)")
        stamp(a, 6)
        a.I("s_barrier")
        a.I("s_cmp_ge_u32 s%d, 160" % S_IDX); a.I("s_cbranch_scc1 A_END")
        a.I("s_barrier")
        stamp(a, 8)
        a2_compute(a)
        stamp(a, 9)
        a.L("A_END")
        end(a, 0, fused=True)
        a.L("A_LOADER")
        a_loader(a, "1")
        a.I("s_cmp_ge_u32 s%d, 160" % S_IDX); a.I("s_cbranch_scc1 AL_NOWO")
        a2_wo_dma(a)
        a.L("AL_NOWO")
        a.I("s_barrier")
        flag_srd(a)
        a.I("s_cmp_eq_u32 s%d, 4" % S_WAVE); a.I("s_cbranch_scc0 AL_NF0")
        load_seed(a)
        a.I("v_lshrrev_b32 v1, 4, v10"); a.I("v_mul_u32_u24 v1, 127, v1")
        a.I("s_lshl_b32 s%d, s%d, 7" % (T0, S_RB2)); a.I("v_add_u32 v1, s%d, v1" % T0)
        a.I("v_mul_u32_u24 v1, 43691, v1"); a.I("v_lshrrev_b32 v1, 23, v1")
        a.I("v_and_b32 v2, 15, v10"); a.I("v_lshl_add_u32 v1, v1, 4, v2"); a.I("v_lshlrev_b32 v3, 7, v1")
        a.I("s_lshl_b32 s%d, s%d, 4" % (T1, S_RB)); a.I("s_add_u32 s%d, s%d, s%d" % (T1, T1, S_HG))
        a.I("s_waitcnt lgkmcnt(0)")
        make_nonce(a)
        a.L("AL_NF0")
        a.I("s_barrier")
        a.I("s_cmp_eq_u32 s%d, 4" % S_WAVE); a.I("s_cbranch_scc0 AL_NF1")
        flag_store(a, T1)
        stamp(a, 8)
        a.I("s_cmp_ge_u32 s%d, 160" % S_IDX); a.I("s_cbranch_scc1 AL_END")
        a.I("v_mov_b32 v1, v3")
        poll(a, "A", 32)
        stamp(a, 9)
        a.L("AL_NF1")
        a.I("s_cmp_ge_u32 s%d, 160" % S_IDX); a.I("s_cbranch_scc1 AL_END")
        a.I("s_waitcnt vmcnt(0)")
        a.I("s_barrier")
        a.L("AL_END")
        end(a, 0, fused=True)
        a.L("ROLE_B_1"); b_ids(a); b1_loads(a)
        a.I("s_cmp_eq_u32 s%d, 0" % S_WAVE); a.I("s_cbranch_scc0 B_NS")
        load_seed(a)
        a.L("B_NS")
        b_h_loads(a)
        a.I("s_waitcnt vmcnt(8)"); stamp(a, 2)
        b1_compute(a); stamp(a, 3)
        a.I("s_waitcnt vmcnt(4)")
        b_h_stage(a)
        a.I("s_waitcnt vmcnt(0)")
        stamp(a, 4)
        a.I("s_barrier")
        a.I("s_cmp_eq_u32 s%d, 0" % S_WAVE); a.I("s_cbranch_scc0 B_NF")
        a.I("s_waitcnt lgkmcnt(0)")
        a.I("s_mov_b32 s%d, s%d" % (S_SEED, S_NONCE))
        make_nonce(a); flag_srd(a)
        a.I("s_add_u32 s%d, s%d, 176" % (T1, S_B))
        flag_store(a, T1)
        a.I("s_and_b32 s%d, s%d, 0xfffffff8" % (T1, S_B)); a.I("s_add_u32 s%d, s%d, 176" % (T1, T1))
        a.I("v_add_u32 v1, s%d, v10" % T1); a.I("v_lshlrev_b32 v1, 7, v1")
        poll(a, "B", 8)
        a.L("B_NF")
        a.I("s_barrier")
        stamp(a, 5)
        b_u_stage(a); b_q_dma(a)
        a.I("s_waitcnt lgkmcnt(0)"); a.I("s_barrier"); stamp(a, 6)
        b2_main(a); stamp(a, 8); b2_epilogue(a); stamp(a, 9)
        a.I("s_or_b32 s%d, s%d, s%d" % (T0, S_B, S_WAVE)); a.I("s_cmp_eq_u32 s%d, 0" % T0); a.I("s_cbranch_scc0 B_END")
        flag_srd(a)
        for q4 in range(4):
            a.I("v_add_u32 v1, %d, v10" % (64*q4)); a.I("v_lshlrev_b32 v1, 7, v1")
            poll(a, "S%d" % q4, 64)
        srd(a, R3, P_WS, 64, WS_SEED)
        a.I("s_add_u32 s%d, s%d, 1" % (S_SEED, S_SEED))
        a.I("s_mov_b64 exec, 1"); a.I("v_mov_b32 v1, 0"); a.I("v_mov_b32 v2, s%d" % S_SEED)
        a.I("buffer_store_dword v2, v1, s[%d:%d], 0 offen sc1" % (R3, R3+3))
        a.I("s_mov_b64 exec, -1")
        a.L("B_END")
        end(a, 0, fused=True)
        a.L("END_1"); a.I("s_endpgm")
        names = [name]
        txt = "; @launch grid=(256,1,1) block=(512,1,1) lds=%d\n.amdgcn_target \"amdgcn-amd-amdhsa--gfx950\"\n.text\n" % LDS
    txt += a.text() + '.section .rodata,"a"\n' + "".join(descriptor(n, 256, 102 if PROF else 96) for n in names)
    check_hazards(txt)
    open(os.environ.get("OUT", "../k.s"), "w").write(txt)

if __name__ == "__main__":
    build()
```

```python
import os, struct
from common import *

PROF  = int(os.environ.get("PROF", "0"))
SPLIT = int(os.environ.get("SPLIT", "0"))
SC1 = " sc1"

WS_O    = 0x000000
WS_UT   = 0x280000
WS_FLAG = 0x500000
WS_SEED = 0x510000
WS_PROF = 0x800000

P_X, P_W, P_WO, P_Q, P_K, P_V, P_SH, P_H, P_D, P_OUT, P_DBG, P_WS = 4, 6, 8, 10, 12, 14, 16, 18, 20, 22, 24, 26
S_WAVE, S_IDX, S_RB, S_HG = 28, 29, 30, 31
R0, R1, R2, R3, R4 = 32, 36, 40, 44, 48
T0, T1, T2, T3, T4, T5 = 52, 53, 54, 55, 56, 57
M0A, M0B = 58, 60
S_NONCE = 62; S_RB2 = 63; S_CB = 64; S_SEED = 79
S_M = 65
S_SLOT, S_XOFF, S_WOFF, S_ST, S_C = 76, 77, 78, 3, 3
STAMP0 = 80
PFD = int(os.environ.get("PFD", "4"))
S_PFO, S_PFS = 74+3, 74+4
S_PFO, S_PFS = 66, 67
V_PF = 15; V_PFD = 0

def stamp(a, i):
    if PROF: a.I("s_memtime s[%d:%d]" % (STAMP0+2*i, STAMP0+2*i+1))
def rstamp(a, i):
    if PROF: a.I("s_memrealtime s[%d:%d]" % (STAMP0+2*i, STAMP0+2*i+1))
def stamp_flush(a, n, phase):
    if not PROF: return
    a.I("s_waitcnt lgkmcnt(0)")
    a.I("s_mov_b64 exec, 1")
    a.I("s_lshl_b32 s%d, s2, 3" % T0); a.I("s_add_u32 s%d, s%d, s%d" % (T0, T0, S_WAVE)); a.I("s_lshl_b32 s%d, s%d, 6" % (T0, T0))
    srd(a, R4, P_WS, 0x40000, WS_PROF + phase*0x40000)
    a.I("v_mov_b32 v1, s%d" % T0)
    for i in range(n):
        a.I("v_mov_b32 v2, s%d" % (STAMP0+2*i))
        a.I("buffer_store_dword v2, v1, s[%d:%d], 0 offen offset:%d" % (R4, R4+3, 4*i))
        a.I("s_nop 1")
    a.I("s_mov_b64 exec, -1")

def vstamp(a, idx):
    if PROF != 2: return
    a.I("s_memtime s[98:99]")
    a.I("s_waitcnt lgkmcnt(0)")
    if str(idx).startswith("s"):
        a.I("s_mov_b32 m0, %s" % idx)
        a.I("s_nop 3")
        a.I("v_writelane_b32 v63, s98, m0")
    else: a.I("v_writelane_b32 v63, s98, %s" % idx)
def vstamp_flush(a):
    if PROF != 2: return
    a.I("s_lshl_b32 s%d, s2, 3" % T0); a.I("s_add_u32 s%d, s%d, s%d" % (T0, T0, S_WAVE)); a.I("s_lshl_b32 s%d, s%d, 8" % (T0, T0))
    srd(a, R4, P_WS, 0x80000, WS_PROF + 0x100000)
    a.I("v_lshlrev_b32 v1, 2, v10"); a.I("v_add_u32 v1, s%d, v1" % T0)
    a.I("buffer_store_dword v63, v1, s[%d:%d], 0 offen" % (R4, R4+3))

def prologue(a, tag):
    a.I("s_cmp_ge_u32 s2, 256")
    a.I("s_cbranch_scc1 END_%s" % tag)
    if PROF:
        for i in range(2, 11): a.I("s_mov_b32 s%d, -1" % (STAMP0+2*i))
    dbg_time_start(a)
    rstamp(a, 0)
    stamp(a, 1)
    a.I("s_load_dwordx16 s[4:19], s[0:1], 0")
    a.I("s_load_dwordx8 s[20:27], s[0:1], 64")
    a.I("v_lshrrev_b32 v11, 6, v0")
    a.I("v_and_b32 v10, 63, v0")
    a.I("s_and_b32 s%d, s2, 7" % T0)
    a.I("s_lshr_b32 s%d, s2, 3" % T1)
    a.I("v_readfirstlane_b32 s%d, v11" % S_WAVE)
    a.I("s_cmp_ge_u32 s%d, 22" % T1)
    a.I("s_cbranch_scc1 ROLE_B_%s" % tag)
    a.I("s_mul_i32 s%d, s%d, 22" % (T0, T0))
    a.I("s_add_u32 s%d, s%d, s%d" % (S_IDX, T0, T1))
    a.I("s_cmp_ge_u32 s%d, 88" % S_IDX)
    a.I("s_cselect_b32 s%d, 88, 0" % T2)
    a.I("s_cselect_b32 s%d, 8, 0" % T3)
    a.I("s_sub_u32 s%d, s%d, s%d" % (T2, S_IDX, T2))
    a.I("s_lshr_b32 s%d, s%d, 3" % (S_RB, T2))
    a.I("s_and_b32 s%d, s%d, 7" % (T2, T2))
    a.I("s_add_u32 s%d, s%d, s%d" % (S_HG, T2, T3))
    a.I("s_mul_i32 s%d, s%d, 6554" % (T2, S_IDX))
    a.I("s_lshr_b32 s%d, s%d, 16" % (S_RB2, T2))
    a.I("s_mul_i32 s%d, s%d, 10" % (T2, S_RB2))
    a.I("s_sub_u32 s%d, s%d, s%d" % (S_CB, S_IDX, T2))

NT = 3
XROWS = 16*(4*NT+1)
XB = XROWS*128
WB = 64*240
SCR = XB + WB
SLOT = XB + WB + 1024
NSLOT = 3; NST = 10
TILES = ['Qm0','Qm1','Km0','Km1','E1','Vm0','Vm1','E2']
ORI   = dict(Qm0=1,Qm1=1,Km0=1,Km1=1,E1=1,Vm0=2,Vm1=2,E2=2)
COL   = dict(Qm0=0,Qm1=40,Km0=80,Km1=120,Vm0=160,Vm1=200)
V_X0, V_X1, V_H0, V_H1, V_W, V_E1, V_E2, V_HK, V_HV, V_LANE = 1,2,3,4,5,6,7,8,9,10
ACC = 16; SETA = 120; SETB = 176
BP0, BP, BC, ONES = 232, 236, 240, 244
def acc(t, name): return ACC + (t*8 + TILES.index(name))*4
ACC_HK = ACC + NT*32; ACC_HV = ACC_HK + 4
def wfrag(S, name): return S + TILES.index(name)*4
def hkf(S): return S + 32
def hvf(S): return S + 36
def xfrag(S, i): return S + 40 + 4*i
L_WO = 0
L_EX = 81920
L_OB = L_EX + 5*3072

def a_loader(a, tag):
    NX, NW = 7, 4
    VX, VW = 16, 24
    a.C("---- A loader (wave a = s_wave-4)")
    a.I("s_sub_u32 s%d, s%d, 4" % (T5, S_WAVE))
    a.I("v_lshrrev_b32 v1, 3, v10")
    a.I("v_and_b32 v2, 7, v10")
    a.I("v_xor_b32 v2, v2, v1")
    a.I("v_lshlrev_b32 v2, 4, v2")
    a.I("s_mul_i32 s%d, s%d, 192" % (T0, S_RB))
    a.I("s_lshl_b32 s%d, s%d, 3" % (T1, T5))
    a.I("s_add_u32 s%d, s%d, s%d" % (T0, T0, T1))
    a.I("s_sub_i32 s%d, s%d, 16" % (T0, T0))
    a.I("v_add_u32 v1, s%d, v1" % T0)
    a.I("s_movk_i32 s%d, 1280" % T1)
    for j in range(NX):
        a.I("v_add_u32 v3, %d, v1" % (32*j))
        a.I("v_max_i32 v3, 0, v3")
        a.I("v_mul_lo_u32 v3, v3, s%d" % T1)
        a.I("v_add_u32 v%d, v3, v2" % (VX+j))
    a.I("s_lshl_b32 s%d, s%d, 10" % (T0, T5))
    for j in range(NX):
        a.I("s_add_u32 s%d, s%d, %d" % (S_M+j, T0, 4096*j))
    a.I("s_cmp_ge_u32 s%d, 2" % T5)
    a.I("s_cselect_b32 s%d, %d, s%d" % (S_M+NX-1, SCR, S_M+NX-1))
    a.I("s_cselect_b32 s%d, 0x7ffffff0, 0" % T2)
    a.I("v_or_b32 v%d, s%d, v%d" % (VX+NX-1, T2, VX+NX-1))
    a.I("s_waitcnt lgkmcnt(0)")
    srd(a, R0, P_X, SZ)
    srd(a, R1, P_W, 640*3840)
    a.I("s_mov_b32 s%d, 0" % S_SLOT); a.I("s_mov_b32 s%d, 0" % S_XOFF); a.I("s_mov_b32 s%d, 0" % S_WOFF)
    def issue_x():
        for j in range(NX):
            a.I("s_add_u32 m0, s%d, s%d" % (S_SLOT, S_M+j))
            a.I("s_nop 0")
            a.I("buffer_load_dwordx4 v%d, s[%d:%d], s%d offen lds" % (VX+j, R0, R0+3, S_XOFF))
    def issue_w():
        for j in range(NW):
            a.I("s_add_u32 m0, s%d, s%d" % (S_SLOT, S_M+NX+j))
            a.I("s_nop 0")
            a.I("buffer_load_dwordx4 v%d, s[%d:%d], s%d offen lds" % (VW+j, R1, R1+3, S_WOFF))
    def advance():
        a.I("s_add_u32 s%d, s%d, 128" % (S_XOFF, S_XOFF))
        a.I("s_add_u32 s%d, s%d, %d" % (S_WOFF, S_WOFF, 64*3840))
        a.I("s_add_u32 s%d, s%d, %d" % (S_SLOT, S_SLOT, SLOT))
        a.I("s_cmp_eq_u32 s%d, %d" % (S_SLOT, NSLOT*SLOT))
        a.I("s_cselect_b32 s%d, 0, s%d" % (S_SLOT, S_SLOT))
    stamp(a, 2)
    if PROF == 2: a.I("v_mov_b32 v63, -1")
    vstamp(a, "0")
    issue_x()
    a.I("s_mul_i32 s%d, s%d, 80" % (T0, S_HG))
    a.I("s_movk_i32 s%d, 4370" % T1)
    a.I("s_movk_i32 s%d, 3840" % T2)
    a.I("s_lshl_b32 s%d, s%d, 6" % (T3, T5))
    for j in range(NW):
        a.I("v_add_u32 v1, s%d, v10" % T3)
        if j: a.I("v_add_u32 v1, %d, v1" % (256*j))
        a.I("v_mul_lo_u32 v2, v1, s%d" % T1)
        a.I("v_lshrrev_b32 v2, 16, v2")
        a.I("v_mul_u32_u24 v3, 15, v2")
        a.I("v_sub_u32 v1, v1, v3")
        a.I("v_and_b32 v3, 0xfffffff8, v2")
        a.I("v_and_b32 v4, 1, v2")
        a.I("v_lshl_add_u32 v3, v4, 2, v3")
        a.I("v_bfe_u32 v4, v2, 1, 2")
        a.I("v_add_u32 v3, v3, v4")
        a.I("v_mul_lo_u32 v3, v3, s%d" % T2)
        a.I("v_mul_u32_u24 v4, 52, v1")
        a.I("v_lshrrev_b32 v4, 8, v4")
        a.I("v_mul_u32_u24 v5, 5, v4")
        a.I("v_sub_u32 v1, v1, v5")
        a.I("v_mul_u32_u24 v4, 1280, v4")
        a.I("v_add_u32 v3, v3, v4")
        a.I("v_lshl_add_u32 v3, v1, 4, v3")
        a.I("v_add_u32 v%d, s%d, v3" % (VW+j, T0))
    a.I("s_lshl_b32 s%d, s%d, 10" % (T0, T5))
    for j in range(NW):
        a.I("s_add_u32 s%d, s%d, %d" % (S_M+NX+j, T0, XB + 4096*j))
    a.I("s_cmp_eq_u32 s%d, 3" % T5)
    a.I("s_cselect_b32 s%d, %d, s%d" % (S_M+NX+NW-1, SCR, S_M+NX+NW-1))
    a.I("s_cselect_b32 s%d, 0x7ffffff0, 0" % T2)
    a.I("v_or_b32 v%d, s%d, v%d" % (VW+NW-1, T2, VW+NW-1))
    issue_w(); advance()
    issue_x(); issue_w(); advance()
    stamp(a, 3)
    a.I("s_waitcnt vmcnt(11)")
    stamp(a, 4)
    vstamp(a, "1")
    a.I("s_barrier")
    vstamp(a, "2")
    issue_x(); issue_w(); advance()
    a.I("s_mov_b32 s%d, 0" % S_ST)
    a.L("AL_LOOP_%s" % tag)
    if PROF == 2:
        a.I("s_lshl_b32 s97, s%d, 1" % S_ST); a.I("s_add_u32 s96, s97, 3"); a.I("s_add_u32 s97, s97, 4"); a.I("s_add_u32 s95, s96, 20")
        vstamp(a, "s95")
    a.I("s_waitcnt vmcnt(11)")
    vstamp(a, "s96")
    a.I("s_barrier")
    vstamp(a, "s97")
    issue_x(); issue_w(); advance()
    a.I("s_add_u32 s%d, s%d, 1" % (S_ST, S_ST))
    a.I("s_cmp_lt_u32 s%d, 7" % S_ST)
    a.I("s_cbranch_scc1 AL_LOOP_%s" % tag)
    a.I("s_waitcnt vmcnt(11)")
    vstamp(a, "17")
    a.I("s_barrier")
    vstamp(a, "18")
    a.I("s_waitcnt vmcnt(0)")
    vstamp(a, "19")
    a.I("s_barrier")
    vstamp(a, "20")
    a.I("s_barrier")
    vstamp(a, "21")
    vstamp_flush(a)
    stamp(a, 5)

def a1_reads(S, ks):
    r = []
    vx = V_X0 if ks == 0 else V_X1
    vh = V_H0 if ks == 0 else V_H1
    for t in range(NT): r.append("ds_read_b128 %s, v%d offset:%d" % (v(xfrag(S,t),4), vx, t*2048))
    for name in TILES:
        for hb in range(2):
            if name == 'E1': base, off = V_E1, 0
            elif name == 'E2': base, off = V_E2, 0
            else: base, off = V_W, COL[name]
            r.append("ds_read_b64_tr_b16 %s, v%d offset:%d" % (v(wfrag(S,name)+2*hb,2), base, off + hb*240 + ks*7680))
    r.append("ds_read_b128 %s, v%d offset:0" % (v(xfrag(S,3),4), vh))
    for hb in range(2): r.append("ds_read_b64_tr_b16 %s, v%d offset:%d" % (v(hkf(S)+2*hb,2), V_HK, hb*240 + ks*7680))
    for hb in range(2): r.append("ds_read_b64_tr_b16 %s, v%d offset:%d" % (v(hvf(S)+2*hb,2), V_HV, hb*240 + ks*7680))
    return r

def a1_mfmas(S, first=False):
    m = []
    def mm(d, wf, xi, ori):
        c = "0" if first else v(d,4)
        if ori == 1: return "v_mfma_f32_16x16x32_bf16 %s, %s, %s, %s" % (v(d,4), v(wf,4), v(xfrag(S,xi),4), c)
        return "v_mfma_f32_16x16x32_bf16 %s, %s, %s, %s" % (v(d,4), v(xfrag(S,xi),4), v(wf,4), c)
    for name in TILES:
        for t in range(NT): m.append(mm(acc(t,name), wfrag(S,name), t, ORI[name]))
    m.append(mm(ACC_HK, hkf(S), 3, 1))
    m.append(mm(ACC_HV, hvf(S), 3, 2))
    return m

def interleave(a, ms, others):
    n = len(ms); k = len(others); idx = 0
    for i, m in enumerate(ms):
        a.I(m)
        upto = (k*(i+1) + n - 1)//n
        while idx < min(upto, k): a.I(others[idx]); idx += 1
    while idx < k: a.I(others[idx]); idx += 1

def pf(a):
    a.I("buffer_load_dword v%d, v%d, s[%d:%d], s%d offen" % (V_PFD, V_PF, R3, R3+3, S_PFO))
    a.I("s_add_u32 s%d, s%d, s%d" % (S_PFO, S_PFO, S_PFS))

def a_compute(a, tag):
    a.C("---- A compute waves 0..3")
    w = S_WAVE
    a.I("v_and_b32 v11, 15, v10")
    a.I("v_lshrrev_b32 v12, 4, v10")
    a.I("v_and_b32 v13, 7, v10")
    a.I("v_xor_b32 v13, v12, v13")
    a.I("v_lshlrev_b32 v13, 4, v13")
    a.I("v_lshl_add_u32 v%d, v11, 7, v13" % V_H0)
    a.I("v_xor_b32 v%d, 64, v%d" % (V_H1, V_H0))
    a.I("s_mul_i32 s%d, s%d, %d" % (T0, w, NT*2048))
    a.I("s_add_u32 s%d, s%d, 2048" % (T0, T0))
    a.I("v_add_u32 v%d, s%d, v%d" % (V_X0, T0, V_H0))
    a.I("v_add_u32 v%d, s%d, v%d" % (V_X1, T0, V_H1))
    a.I("v_bfe_u32 v13, v10, 2, 2")
    a.I("v_lshlrev_b32 v14, 3, v12")
    a.I("v_lshl_add_u32 v14, v13, 1, v14")
    a.I("v_mul_u32_u24 v14, 240, v14")
    a.I("v_add_u32 v14, %d, v14" % XB)
    a.I("v_and_b32 v13, 3, v10")
    a.I("v_lshl_add_u32 v%d, v13, 3, v14" % V_W)
    a.I("v_mul_u32_u24 v15, 40, v13")
    a.I("v_add3_u32 v%d, v15, v14, 32" % V_E1)
    a.I("v_and_b32 v13, 1, v13")
    a.I("v_mul_u32_u24 v15, 40, v13")
    a.I("v_add_u32 v15, 192, v15")
    a.I("v_add_u32 v%d, v15, v14" % V_E2)
    a.I("s_mul_i32 s%d, s%d, 40" % (T0, w))
    a.I("s_add_u32 s%d, s%d, 80" % (T1, T0))
    a.I("s_add_u32 s%d, s%d, 160" % (T2, T0))
    a.I("v_add_u32 v%d, s%d, v%d" % (V_HK, T1, V_W))
    a.I("v_add_u32 v%d, s%d, v%d" % (V_HV, T2, V_W))
    a.I("s_cmp_ge_u32 s%d, 2" % w)
    a.I("s_cbranch_scc0 AC_H_%s" % tag)
    a.I("v_mov_b32 v%d, v%d" % (V_HK, V_E1))
    a.I("v_mov_b32 v%d, v%d" % (V_HV, V_E2))
    a.L("AC_H_%s" % tag)
    a.I("s_mov_b32 s%d, 0xf149f2ca" % T0)
    a.I("v_lshlrev_b32 v13, 2, v12")
    a.I("v_sub_u32 v13, v11, v13")
    a.I("v_mov_b32 v15, s%d" % T0)
    for r in range(4):
        a.I("v_subrev_u32 v14, %d, v13" % r)
        a.I("v_and_b32 v11, 1, v14")
        a.I("v_cmp_eq_u32 vcc, 0, v11")
        a.I("v_cmp_le_i32 s[%d:%d], 0, v14" % (M0A, M0A+1))
        a.I("v_cmp_ge_i32 s[%d:%d], -2, v14" % (M0B, M0B+1))
        a.I("s_and_b64 s[%d:%d], s[%d:%d], vcc" % (M0A, M0A+1, M0A, M0A+1))
        a.I("s_and_b64 s[%d:%d], s[%d:%d], vcc" % (M0B, M0B+1, M0B, M0B+1))
        a.I("v_mov_b32 v%d, 0x3f803f80" % (ONES+r))
        a.I("v_cndmask_b32 v%d, v15, 0, s[%d:%d]" % (BC+r, M0A, M0A+1))
        a.I("v_cndmask_b32 v%d, v15, 0, s[%d:%d]" % (BP+r, M0B, M0B+1))
        a.I("v_cndmask_b32 v%d, v15, 0, s[%d:%d]" % (BP0+r, M0B, M0B+1))
    a.I("s_or_b32 s%d, s%d, s%d" % (T1, S_RB, w))
    a.I("s_cmp_eq_u32 s%d, 0" % T1)
    a.I("s_cbranch_scc0 AC_B_%s" % tag)
    for r in range(4): a.I("v_mov_b32 v%d, v15" % (BP0+r))
    a.L("AC_B_%s" % tag)
    if PFD:
        a.I("s_waitcnt lgkmcnt(0)")
        a.I("s_cmp_eq_u32 s%d, 1" % w)
        a.I("s_cbranch_scc1 PF_W_%s" % tag)
        srd(a, R3, P_X, SZ)
        a.I("s_and_b32 s%d, s2, 3" % T0); a.I("s_mul_i32 s%d, s%d, 22" % (T0, T0))
        a.I("s_add_u32 s%d, s%d, 21" % (T1, T0)); a.I("s_lshr_b32 s%d, s%d, 3" % (T0, T0)); a.I("s_lshr_b32 s%d, s%d, 3" % (T1, T1))
        a.I("s_add_u32 s%d, s%d, 1" % (T1, T1)); a.I("s_mul_i32 s%d, s%d, %d" % (T1, T1, 192*1280))
        a.I("s_mul_i32 s%d, s%d, 192" % (T0, T0)); a.I("s_sub_i32 s%d, s%d, 16" % (T0, T0))
        a.I("s_max_i32 s%d, s%d, 0" % (T0, T0))
        a.I("s_lshr_b32 s%d, s2, 3" % T2); a.I("s_mul_i32 s%d, s%d, 36" % (T2, T2)); a.I("s_add_i32 s%d, s%d, s%d" % (T0, T0, T2))
        a.I("s_mul_i32 s%d, s%d, 1280" % (T0, T0))
        a.I("s_sub_u32 s%d, s%d, 1" % (T2, w)); a.I("s_max_i32 s%d, s%d, 0" % (T2, T2)); a.I("s_lshl_b32 s%d, s%d, 14" % (T2, T2))
        a.I("s_add_u32 s%d, s%d, s%d" % (T2, T0, T2))
        a.I("v_lshlrev_b32 v11, 7, v10"); a.I("v_add_u32 v%d, s%d, v11" % (V_PF, T2))
        a.I("s_add_u32 s%d, s%d, %d" % (T0, T0, 36*1280)); a.I("s_min_u32 s%d, s%d, s%d" % (R3+2, T0, T1)); a.I("s_min_u32 s%d, s%d, %d" % (R3+2, R3+2, SZ))
        a.I("s_mov_b32 s%d, 0" % S_PFO); a.I("s_mov_b32 s%d, 8192" % S_PFS)
        pf(a); pf(a)
        a.I("s_mov_b32 s%d, 0" % (R3+2))
        a.I("s_branch PF_D_%s" % tag)
        a.L("PF_W_%s" % tag)
        srd(a, R3, P_W, 640*3840)
        a.I("s_lshr_b32 s%d, s2, 3" % T0); a.I("s_mul_i32 s%d, s%d, 44" % (T0, T0))
        a.I("v_add_u32 v11, s%d, v10" % T0)
        a.I("v_mul_u32_u24 v12, 4370, v11"); a.I("v_lshrrev_b32 v12, 16, v12")
        a.I("v_mul_u32_u24 v13, 15, v12"); a.I("v_sub_u32 v13, v11, v13")
        a.I("v_mul_u32_u24 v14, 52, v13"); a.I("v_lshrrev_b32 v14, 8, v14")
        a.I("v_mul_u32_u24 v11, 5, v14"); a.I("v_sub_u32 v13, v13, v11")
        a.I("v_mul_u32_u24 v12, 3840, v12"); a.I("v_mul_u32_u24 v14, 1280, v14")
        a.I("v_add_u32 v12, v12, v14"); a.I("v_lshl_add_u32 v12, v13, 7, v12")
        a.I("s_lshr_b32 s%d, s%d, 3" % (T0, S_HG)); a.I("s_mul_i32 s%d, s%d, 640" % (T0, T0))
        a.I("v_add_u32 v%d, s%d, v12" % (V_PF, T0))
        a.I("v_cmp_gt_u32 vcc, 44, v10")
        a.I("s_mov_b32 s%d, %d" % (S_PFS, 64*3840))
        a.I("v_mov_b32 v11, 0x7ffffff0")
        a.I("s_mov_b32 s%d, 0" % S_PFO)
        a.I("v_cndmask_b32 v%d, v11, v%d, vcc" % (V_PF, V_PF))
        for st in range(PFD): pf(a)
        a.L("PF_D_%s" % tag)
    a.I("s_mov_b32 s%d, %d" % (T0, SLOT))
    a.I("s_mov_b32 s%d, %d" % (T1, (-(NSLOT-1)*SLOT) & 0xffffffff))
    stamp(a, 2)
    a.I("s_barrier")
    stamp(a, 3)
    for r in a1_reads(SETA, 0): a.I(r)
    a.I("s_waitcnt lgkmcnt(0)")
    bases = (V_X0, V_X1, V_H0, V_H1, V_W, V_E1, V_E2, V_HK, V_HV)
    for st in range(NST):
        dl = T1 if (st+1) % NSLOT == 0 else T0
        upd = ["v_add_u32 v%d, s%d, v%d" % (r, dl, r) for r in bases] if st < NST-1 else []
        interleave(a, a1_mfmas(SETA, first=(st == 0)), a1_reads(SETB, 1) + upd)
        a.I("s_waitcnt lgkmcnt(0)")
        a.I("s_barrier")
        if PFD and st + PFD < NST: pf(a)
        interleave(a, a1_mfmas(SETB), a1_reads(SETA, 0) if st < NST-1 else [])
        if st < NST-1: a.I("s_waitcnt lgkmcnt(0)")
    stamp(a, 4)

def a_attention(a, tag):
    w = S_WAVE
    KN = 120; Kt = [128, 136, 144]
    V0B, V1B, VXB = 152, 160, 168
    Q = lambda t,h: 176 + 8*t + 4*h
    P = lambda u: 200 + 4*u
    TMP = 224
    H = 248
    SS = lambda u: 16 + 8*u
    M = lambda u: 88 + 2*u
    O = lambda u: 16 + 12*u
    def pk(d, s0):
        a.I("v_cvt_pk_bf16_f32 v%d, v%d, v%d" % (d, s0, s0+1))
        a.I("v_cvt_pk_bf16_f32 v%d, v%d, v%d" % (d+1, s0+2, s0+3))
    a.I("s_waitcnt vmcnt(0)")
    a.nop(6)
    for t in (NT-1,) + tuple(range(NT-1)):
        pk(Kt[t]+0, acc(t,'Km0')); pk(Kt[t]+4, acc(t,'Km1'))
        pk(V0B+2+2*t, acc(t,'Vm0')); pk(V1B+2+2*t, acc(t,'Vm1')); pk(VXB+2+2*t, acc(t,'E2'))
        pk(TMP+2*t, acc(t,'E1'))
        a.I("v_mov_b32 v%d, 0" % (Kt[t]+2)); a.I("v_mov_b32 v%d, 0" % (Kt[t]+3))
        pk(Q(t,0)+0, acc(t,'Qm0')); pk(Q(t,1)+2, acc(t,'Qm1'))
    pk(H, ACC_HK); pk(H+4, ACC_HV)
    a.I("v_mov_b32 v%d, v%d" % (H+6, H)); a.I("v_mov_b32 v%d, v%d" % (H+7, H+1))
    a.I("v_mov_b32 v%d, 0" % (H+2)); a.I("v_mov_b32 v%d, 0" % (H+3))
    a.I("v_lshlrev_b32 v11, 3, v10")
    for t in range(NT):
        for i in range(2): a.I("v_permlane32_swap_b32 v%d, v%d" % (TMP+2*t+i, Kt[t]+2+i))
    for i in range(2): a.I("v_permlane32_swap_b32 v%d, v%d" % (H+6+i, H+2+i))
    a.I("s_cmp_ge_u32 s%d, 2" % w)
    a.I("s_cselect_b64 s[%d:%d], -1, 0" % (M0A, M0A+1))
    a.I("s_add_u32 s%d, s%d, 1" % (T0, w)); a.I("s_mul_i32 s%d, s%d, 3072" % (T0, T0)); a.I("s_add_u32 s%d, s%d, %d" % (T0, T0, L_EX))
    a.I("v_add_u32 v12, s%d, v11" % T0)
    a.I("v_cndmask_b32 v%d, v%d, v%d, s[%d:%d]" % (H, H, H+2, M0A, M0A+1))
    a.I("v_cndmask_b32 v%d, v%d, v%d, s[%d:%d]" % (H+1, H+1, H+3, M0A, M0A+1))
    a.I("s_cmp_eq_u32 s%d, 1" % w); a.I("s_cselect_b32 s%d, 2, 0" % T1)
    a.I("s_cmp_eq_u32 s%d, 2" % w); a.I("s_cselect_b32 s%d, 1, s%d" % (T1, T1))
    a.I("s_lshl_b32 s%d, s%d, 9" % (T1, T1)); a.I("s_add_u32 s%d, s%d, %d" % (T1, T1, L_EX))
    a.I("s_add_u32 s%d, s%d, 3" % (T2, w)); a.I("s_lshl_b32 s%d, s%d, 9" % (T2, T2)); a.I("s_add_u32 s%d, s%d, %d" % (T2, T2, L_EX))
    a.I("v_add_u32 v13, s%d, v11" % T1)
    a.I("v_add_u32 v14, s%d, v11" % T2)
    lt = NT-1
    a.I("ds_write_b64 v12, %s offset:%d" % (v(Kt[lt]+0,2), 0*512))
    a.I("ds_write_b64 v12, %s offset:%d" % (v(Kt[lt]+2,2), 1*512))
    a.I("ds_write_b64 v12, %s offset:%d" % (v(Kt[lt]+4,2), 2*512))
    a.I("ds_write_b64 v12, %s offset:%d" % (v(V0B+2+2*lt,2), 3*512))
    a.I("ds_write_b64 v12, %s offset:%d" % (v(V1B+2+2*lt,2), 4*512))
    a.I("ds_write_b64 v12, %s offset:%d" % (v(VXB+2+2*lt,2), 5*512))
    a.I("s_cmp_eq_u32 s%d, 3" % w)
    a.I("s_cbranch_scc1 AT_NH_%s" % tag)
    a.I("ds_write_b64 v13, %s" % v(H,2))
    a.I("ds_write_b64 v14, %s" % v(H+4,2))
    a.L("AT_NH_%s" % tag)
    a.I("s_mov_b64 s[%d:%d], 0xffff" % (M0A, M0A+1))
    a.I("s_mov_b32 s%d, 0xffff0000" % M0B); a.I("s_mov_b32 s%d, 0" % (M0B+1))
    for t in range(NT):
        for i in range(2):
            a.I("v_cndmask_b32 v%d, 0, v%d, s[%d:%d]" % (Q(t,0)+2+i, TMP+2*t+i, M0A, M0A+1))
            a.I("v_cndmask_b32 v%d, 0, v%d, s[%d:%d]" % (Q(t,1)+0+i, TMP+2*t+i, M0B, M0B+1))
    a.I("s_mul_i32 s%d, s%d, 3072" % (T0, w)); a.I("s_add_u32 s%d, s%d, %d" % (T0, T0, L_EX))
    a.I("v_add_u32 v12, s%d, v11" % T0)
    a.I("s_waitcnt lgkmcnt(0)")
    a.I("s_barrier")
    a.I("ds_read_b64 %s, v12 offset:%d" % (v(KN+0,2), 0*512))
    a.I("ds_read_b64 %s, v12 offset:%d" % (v(KN+2,2), 1*512))
    a.I("ds_read_b64 %s, v12 offset:%d" % (v(KN+4,2), 2*512))
    a.I("ds_read_b64 %s, v12 offset:%d" % (v(V0B,2), 3*512))
    a.I("ds_read_b64 %s, v12 offset:%d" % (v(V1B,2), 4*512))
    a.I("ds_read_b64 %s, v12 offset:%d" % (v(VXB,2), 5*512))
    units = [(t,h) for t in range(NT) for h in range(2)]
    NU = len(units)
    Kop = lambda blk, h: v(blk + (0 if h == 0 else 2), 4)
    for u,(t,h) in enumerate(units):
        a.I("v_mfma_f32_16x16x32_bf16 %s, %s, %s, %s" % (v(SS(u)+4,4), Kop(Kt[t],h), v(Q(t,h),4), v(BC,4)))
    for u,(t,h) in enumerate(units):
        if t >= 1: a.I("v_mfma_f32_16x16x32_bf16 %s, %s, %s, %s" % (v(SS(u),4), Kop(Kt[t-1],h), v(Q(t,h),4), v(BP,4)))
    a.I("s_mul_i32 s%d, s%d, 3840" % (T0, w)); a.I("s_add_u32 s%d, s%d, %d" % (T0, T0, L_OB))
    a.I("v_and_b32 v11, 15, v10"); a.I("v_lshlrev_b32 v11, 4, v11"); a.I("v_add_u32 v11, s%d, v11" % T0)
    a.I("v_lshrrev_b32 v12, 4, v10")
    a.I("v_lshrrev_b32 v13, 1, v12"); a.I("v_and_b32 v14, 1, v12")
    a.I("v_lshlrev_b32 v13, 8, v13"); a.I("v_lshl_add_u32 v13, v14, 3, v13")
    a.I("v_add_u32 v1, v13, v11")
    a.I("v_add_u32 v13, 5, v12"); a.I("v_and_b32 v14, 1, v13"); a.I("v_lshrrev_b32 v13, 1, v13")
    a.I("v_lshlrev_b32 v13, 8, v13"); a.I("v_lshl_add_u32 v13, v14, 3, v13")
    a.I("v_add_u32 v2, v13, v11")
    a.I("v_mul_u32_u24 v13, 520, v12")
    a.I("v_add3_u32 v3, v13, v11, 0")
    a.I("v_add_u32 v3, 512, v3")
    a.I("s_waitcnt lgkmcnt(0)")
    for u,(t,h) in enumerate(units):
        if t == 0: a.I("v_mfma_f32_16x16x32_bf16 %s, %s, %s, %s" % (v(SS(u),4), Kop(KN,h), v(Q(t,h),4), v(BP0,4)))
    order = [u for u,(t,h) in enumerate(units) if t >= 1] + [u for u,(t,h) in enumerate(units) if t == 0]
    a.nop(2)
    for u in order:
        s0 = SS(u)
        a.I("v_max3_f32 v%d, v%d, v%d, v%d" % (M(u), s0+4, s0+5, s0+6))
        a.I("v_max3_f32 v%d, v%d, v%d, v%d" % (M(u)+1, s0+7, s0, s0+1))
    for u in order:
        s0 = SS(u)
        a.I("v_max3_f32 v%d, v%d, v%d, v%d" % (M(u), M(u), s0+2, s0+3))
    for u in order:
        a.I("v_max_f32 v%d, v%d, v%d" % (M(u), M(u), M(u)+1))
    for sw in ("v_permlane32_swap_b32", "v_permlane16_swap_b32"):
        for u in order: a.I("v_mov_b32 v%d, v%d" % (M(u)+1, M(u)))
        for u in order: a.I("%s v%d, v%d" % (sw, M(u), M(u)+1))
        for u in order: a.I("v_max_f32 v%d, v%d, v%d" % (M(u), M(u), M(u)+1))
    C = 0.22360679774997896 * 1.4426950408889634
    cbits = struct.unpack('<I', struct.pack('<f', C))[0]
    a.I("s_mov_b32 s%d, 0x%x" % (T1, cbits))
    for u in order: a.I("v_mul_f32 v%d, s%d, v%d" % (M(u), T1, M(u)))
    for u in order:
        for i in range(8): a.I("v_fma_f32 v%d, v%d, s%d, -v%d" % (SS(u)+i, SS(u)+i, T1, M(u)))
        for i in range(8): a.I("v_exp_f32 v%d, v%d" % (SS(u)+i, SS(u)+i))
    for u in order:
        for i in range(4): a.I("v_cvt_pk_bf16_f32 v%d, v%d, v%d" % (P(u)+i, SS(u)+2*i, SS(u)+2*i+1))
    a.nop(1)
    for u,(t,h) in enumerate(units):
        vb = (V0B if h == 0 else V1B) + 2*t
        a.I("v_mfma_f32_16x16x32_bf16 %s, %s, %s, 0" % (v(O(u)+8,4), v(ONES,4), v(P(u),4)))
        a.I("v_mfma_f32_16x16x32_bf16 %s, %s, %s, 0" % (v(O(u),4), v(vb,4), v(P(u),4)))
        a.I("v_mfma_f32_16x16x32_bf16 %s, %s, %s, 0" % (v(O(u)+4,4), v(VXB+2*t,4), v(P(u),4)))
    a.I("s_mul_i32 s%d, s%d, 12" % (T1, S_RB)); a.I("s_mul_i32 s%d, s%d, 3" % (T2, w)); a.I("s_add_u32 s%d, s%d, s%d" % (T1, T1, T2))
    a.I("s_mul_i32 s%d, s%d, 20480" % (T1, T1)); a.I("s_mul_i32 s%d, s%d, 1280" % (T2, S_HG)); a.I("s_add_u32 s%d, s%d, s%d" % (T1, T1, T2))
    a.I("s_movk_i32 s%d, 19200" % T2)
    for i in range(4):
        a.I("v_add_u32 v11, %d, v10" % (64*i))
        a.I("v_mul_u32_u24 v12, 820, v11"); a.I("v_lshrrev_b32 v12, 16, v12")
        a.I("v_mul_lo_u32 v12, v12, s%d" % T2)
        a.I("v_lshl_add_u32 v12, v11, 4, v12")
        a.I("v_add_u32 v%d, s%d, v12" % (4+i, T1))
    a.I("v_cmp_gt_u32 vcc, 48, v10")
    a.I("v_mov_b32 v11, 0x7ffffff0")
    a.I("s_nop 0")
    a.I("v_cndmask_b32 v7, v11, v7, vcc")
    a.I("v_lshlrev_b32 v8, 4, v10"); a.I("v_add_u32 v8, s%d, v8" % T0)
    for u in range(NU): a.I("v_rcp_f32 v%d, v%d" % (O(u)+8, O(u)+8))
    for u in range(NU):
        for i in range(8): a.I("v_mul_f32 v%d, v%d, v%d" % (O(u)+i, O(u)+i, O(u)+8))
        pk(P(u), O(u)); pk(P(u)+2, O(u)+4)
    for u,(t,h) in enumerate(units):
        a.I("ds_write_b64 v%d, %s offset:%d" % (1+h, v(P(u),2), t*1280))
    for t in range(NT):
        u0, u1 = 2*t, 2*t+1
        for i in range(2): a.I("v_cndmask_b32 v%d, v%d, v%d, s[%d:%d]" % (TMP+2*t+i, P(u1)+2+i, P(u0)+2+i, M0A, M0A+1))
    a.I("s_mov_b32 exec_hi, 0")
    for t in range(NT): a.I("ds_write_b64 v3, %s offset:%d" % (v(TMP+2*t,2), t*1280))
    a.I("s_mov_b64 exec, -1")
    srd(a, R2, P_WS, SZ, WS_O)
    a.I("s_waitcnt lgkmcnt(0)")
    for i in range(4): a.I("ds_read_b128 %s, v8 offset:%d" % (v(120+4*i,4), 1024*i))
    for i in range(4):
        a.I("s_waitcnt lgkmcnt(%d)" % (3-i))
        a.I("buffer_store_dwordx4 %s, v%d, s[%d:%d], 0 offen%s" % (v(120+4*i,4), 4+i, R2, R2+3, SC1))
    stamp(a, 5)

def load_seed(a):
    a.I("s_add_u32 s%d, s%d, 0x%x" % (T2, P_WS, WS_SEED)); a.I("s_addc_u32 s%d, s%d, 0" % (T3, P_WS+1))
    a.I("s_load_dword s%d, s[%d:%d], 0" % (S_NONCE, T2, T3))
def make_nonce(a):
    a.I("s_mul_i32 s%d, s%d, 0x9e3779b1" % (S_NONCE, S_NONCE))
    a.I("s_add_u32 s%d, s%d, 0x85ebca6b" % (S_NONCE, S_NONCE))
def flag_store(a, sidx):
    a.I("s_lshl_b32 s%d, s%d, 7" % (T0, sidx))
    a.I("s_mov_b64 exec, 1")
    a.I("v_mov_b32 v1, s%d" % T0); a.I("v_mov_b32 v2, s%d" % S_NONCE)
    a.I("buffer_store_dword v2, v1, s[%d:%d], 0 offen sc1" % (R4, R4+3))
    a.I("s_mov_b64 exec, -1")
def poll(a, tag, nlanes):
    a.I("s_mov_b64 exec, 0x%x" % ((1 << nlanes) - 1) if nlanes < 32 else "s_mov_b32 exec_lo, -1\ns_mov_b32 exec_hi, 0" if nlanes == 32 else "s_mov_b64 exec, -1")
    a.I("s_mov_b32 s%d, 0" % T0)
    a.L("POLL_%s" % tag)
    a.I("buffer_load_dword v2, v1, s[%d:%d], 0 offen sc1" % (R4, R4+3))
    a.I("s_add_u32 s%d, s%d, 1" % (T0, T0))
    a.I("s_waitcnt vmcnt(0)")
    a.I("v_cmp_ne_u32 vcc, s%d, v2" % S_NONCE)
    a.I("s_cmp_gt_u32 s%d, 20000" % T0)
    a.I("s_cbranch_scc1 POLLED_%s" % tag)
    a.I("s_cmp_eq_u64 vcc, 0")
    a.I("s_cbranch_scc1 POLLED_%s" % tag)
    a.I("s_sleep 1")
    a.I("s_branch POLL_%s" % tag)
    a.L("POLLED_%s" % tag)
    a.I("s_mov_b64 exec, -1")

def a2_wo_dma(a):
    a.I("s_sub_u32 s%d, s%d, 4" % (T5, S_WAVE))
    srd(a, R0, P_WO, 640*1280)
    a.I("v_lshrrev_b32 v1, 3, v10")
    a.I("v_bfe_u32 v2, v1, 1, 1")
    a.I("s_and_b32 s%d, s%d, 1" % (T0, T5)); a.I("s_lshl_b32 s%d, s%d, 1" % (T0, T0))
    a.I("v_or_b32 v2, s%d, v2" % T0)
    a.I("v_lshlrev_b32 v2, 1, v2")
    a.I("v_and_b32 v3, 7, v10")
    a.I("v_xor_b32 v2, v2, v3")
    a.I("s_lshl_b32 s%d, s%d, 3" % (T0, T5))
    a.I("v_add_u32 v1, s%d, v1" % T0)
    a.I("v_mul_u32_u24 v1, 1280, v1")
    a.I("v_lshl_add_u32 v1, v2, 4, v1")
    a.I("s_lshl_b32 s%d, s%d, 7" % (T0, S_CB))
    a.I("v_add_u32 v1, s%d, v1" % T0)
    a.I("s_lshl_b32 s%d, s%d, 10" % (T1, T5))
    a.I("s_mov_b32 s%d, 0" % T2)
    for j in range(20):
        a.I("s_add_u32 m0, s%d, %d" % (T1, L_WO + 4096*j))
        a.I("s_nop 0")
        a.I("buffer_load_dwordx4 v1, s[%d:%d], s%d offen lds" % (R0, R0+3, T2))
        if j < 19: a.I("s_add_u32 s%d, s%d, 40960" % (T2, T2))

def a2_compute(a):
    OF = lambda ks, t: 16 + (ks*2 + t)*4
    AC = lambda t, j: 176 + (t*4 + j)*4
    WF = lambda S, j: 208 + S*16 + j*4
    w = S_WAVE
    srd(a, R2, P_WS, SZ, WS_O)
    a.I("s_lshl_b32 s%d, s%d, 3" % (T0, S_RB2)); a.I("s_lshl_b32 s%d, s%d, 1" % (T1, w)); a.I("s_add_u32 s%d, s%d, s%d" % (T0, T0, T1))
    a.I("s_mul_i32 s%d, s%d, 20480" % (T0, T0))
    a.I("v_lshlrev_b32 v1, 4, v10"); a.I("v_add_u32 v1, s%d, v1" % T0)
    a.I("v_add_u32 v2, 20480, v1")
    for k4 in range(5):
        a.I("s_mov_b32 s%d, %d" % (T1, 4096*k4))
        for kk in range(4):
            for t in range(2):
                a.I("buffer_load_dwordx4 %s, v%d, s[%d:%d], s%d offen offset:%d%s" % (v(OF(4*k4+kk,t),4), 1+t, R2, R2+3, T1, 1024*kk, SC1))
    a.I("v_lshrrev_b32 v11, 4, v10")
    a.I("v_bfe_u32 v12, v10, 2, 2")
    a.I("v_lshl_add_u32 v13, v11, 3, v12")
    a.I("v_lshlrev_b32 v13, 7, v13")
    a.I("v_lshrrev_b32 v14, 1, v12")
    a.I("v_and_b32 v15, 1, v11")
    a.I("v_lshl_add_u32 v14, v15, 1, v14")
    a.I("v_lshlrev_b32 v14, 1, v14")
    a.I("v_bfe_u32 v15, v10, 1, 1")
    a.I("v_lshl_add_u32 v13, v15, 4, v13")
    a.I("v_and_b32 v15, 1, v10")
    a.I("v_lshl_add_u32 v13, v15, 3, v13")
    for j in range(4):
        a.I("v_xor_b32 v15, %d, v14" % (2*j))
        a.I("v_lshl_add_u32 v%d, v15, 4, v13" % (3+j))
    def reads(S, ks):
        r = []
        o = ks*4096 - (40960 if ks >= 10 else 0)
        for j in range(4):
            for hb in range(2):
                r.append("ds_read_b64_tr_b16 %s, v%d offset:%d" % (v(WF(S,j)+2*hb,2), 3+j, L_WO + o + hb*512))
        return r
    for r in reads(0, 0): a.I(r)
    srd(a, R3, P_OUT, 2048*2560)
    a.I("s_lshl_b32 s%d, s%d, 7" % (T0, S_RB2)); a.I("s_lshl_b32 s%d, s%d, 5" % (T1, w)); a.I("s_add_u32 s%d, s%d, s%d" % (T0, T0, T1))
    a.I("v_and_b32 v12, 15, v10"); a.I("v_add_u32 v12, s%d, v12" % T0)
    a.I("v_mul_u32_u24 v12, 2560, v12")
    a.I("v_and_b32 v13, 1, v11"); a.I("v_lshlrev_b32 v13, 5, v13")
    a.I("v_lshrrev_b32 v14, 1, v11"); a.I("v_lshl_add_u32 v13, v14, 4, v13")
    a.I("s_lshl_b32 s%d, s%d, 7" % (T0, S_CB))
    a.I("v_add3_u32 v7, v12, v13, s%d" % T0)
    a.I("v_add_u32 v8, 40960, v7")
    a.I("s_mov_b32 s%d, 40960" % T1)
    for ks in range(20):
        S = ks & 1
        a.I("s_waitcnt vmcnt(%d) lgkmcnt(0)" % (38 - 2*ks))
        ms = []
        for j in range(4):
            for t in range(2):
                c = "0" if ks == 0 else v(AC(t,j),4)
                ms.append("v_mfma_f32_16x16x32_bf16 %s, %s, %s, %s" % (v(AC(t,j),4), v(WF(S,j),4), v(OF(ks,t),4), c))
        oth = []
        if ks == 9: oth += ["v_add_u32 v%d, s%d, v%d" % (3+j, T1, 3+j) for j in range(4)]
        if ks < 19: oth += reads(1-S, ks+1)
        interleave(a, ms, oth)
    a.nop(7)
    PK = 16
    for t in range(2):
        for p in range(2):
            d = PK + (t*2+p)*4
            for hh in range(2):
                s0 = AC(t, 2*p+hh)
                a.I("v_cvt_pk_bf16_f32 v%d, v%d, v%d" % (d+2*hh, s0, s0+1))
                a.I("v_cvt_pk_bf16_f32 v%d, v%d, v%d" % (d+2*hh+1, s0+2, s0+3))
    a.nop(1)
    for t in range(2):
        for p in range(2):
            d = PK + (t*2+p)*4
            a.I("v_permlane16_swap_b32 v%d, v%d" % (d, d+2))
            a.I("v_permlane16_swap_b32 v%d, v%d" % (d+1, d+3))
    for t in range(2):
        for p in range(2):
            d = PK + (t*2+p)*4
            a.I("buffer_store_dwordx4 %s, v%d, s[%d:%d], 0 offen offset:%d" % (v(d,4), 7+t, R3, R3+3, 64*p))

H_SZ = 8320; U_SZ = 4608
L_H = 0; L_U = 8*H_SZ; L_Q = L_U + 8*U_SZ; L_BEND = L_Q + 32768
L_T = L_U
L_Y = 0; Y_P = 4160
S_B = S_IDX

def b_ids(a):
    a.I("s_mul_i32 s%d, s%d, 10" % (T0, T0))
    a.I("s_add_u32 s%d, s%d, s%d" % (S_B, T0, T1))
    a.I("s_sub_u32 s%d, s%d, 22" % (S_B, S_B))

def b1_loads(a):
    KR = lambda i: 16 + 4*i; VR = lambda j: 44 + 4*j; WR = 60
    a.I("v_and_b32 v11, 255, v0")
    a.I("v_lshrrev_b32 v12, 3, v11")
    a.I("v_and_b32 v13, 7, v11")
    a.I("s_lshr_b32 s%d, s%d, 3" % (S_RB2, S_B))
    a.I("s_and_b32 s%d, s%d, 7" % (T0, S_B)); a.I("s_lshl_b32 s%d, s%d, 1" % (T0, T0)); a.I("s_lshr_b32 s%d, s%d, 2" % (T1, S_WAVE))
    a.I("s_add_u32 s%d, s%d, s%d" % (S_RB, T0, T1))
    a.I("s_lshl_b32 s%d, s%d, 7" % (T0, S_RB))
    a.I("v_lshl_add_u32 v14, v12, 2, s%d" % T0)
    a.I("v_mul_u32_u24 v14, 1280, v14")
    a.I("s_lshl_b32 s%d, s%d, 7" % (T0, S_RB2))
    a.I("v_lshl_add_u32 v14, v13, 4, v14")
    a.I("v_add_u32 v1, s%d, v14" % T0)
    a.I("v_subrev_u32 v2, 1280, v1"); a.I("v_subrev_u32 v3, 2560, v1"); a.I("v_subrev_u32 v4, 3840, v1")
    a.I("s_lshl_b32 s%d, s%d, 9" % (T0, S_RB2))
    a.I("v_lshl_add_u32 v5, v13, 6, s%d" % T0)
    a.I("s_waitcnt lgkmcnt(0)")
    srd(a, R0, P_K, SZ); srd(a, R1, P_V, SZ); srd(a, R2, P_SH, 640*8)
    for i in range(4): a.I("buffer_load_dwordx4 %s, v5, s[%d:%d], 0 offen offset:%d" % (v(WR+4*i,4), R2, R2+3, 16*i))
    for i in range(3): a.I("buffer_load_dwordx4 %s, v%d, s[%d:%d], 0 offen" % (v(KR(i),4), 4-i, R0, R0+3))
    for i in range(4): a.I("buffer_load_dwordx4 %s, v1, s[%d:%d], 0 offen offset:%d" % (v(KR(3+i),4), R0, R0+3, 1280*i))
    for j in range(4): a.I("buffer_load_dwordx4 %s, v1, s[%d:%d], 0 offen offset:%d" % (v(VR(j),4), R1, R1+3, 1280*j))

def b_h_loads(a):
    a.I("s_lshl_b32 s%d, s%d, 3" % (T0, S_B)); a.I("s_add_u32 s%d, s%d, s%d" % (T0, T0, S_WAVE))
    a.I("s_lshl_b32 s%d, s%d, 12" % (T1, T0))
    a.I("s_add_u32 s%d, s%d, s%d" % (R3, P_H, T1)); a.I("s_addc_u32 s%d, s%d, 0" % (R3+1, P_H+1))
    a.I("s_and_b32 s%d, s%d, 0xffff" % (R3+1, R3+1)); a.I("s_mov_b32 s%d, 4096" % (R3+2)); a.I("s_mov_b32 s%d, 0x20000" % (R3+3))
    a.I("v_lshlrev_b32 v6, 4, v10")
    for i in range(4): a.I("buffer_load_dwordx4 %s, v6, s[%d:%d], 0 offen offset:%d" % (v(128+4*i,4), R3, R3+3, 1024*i))
    for i in range(4): a.I("buffer_load_dwordx4 %s, v6, s[%d:%d], 0 offen offset:%d" % (v(144+4*i,4), R3, R3+3, 1024*i+4))
    a.I("s_and_b32 s%d, s%d, 0xfffffffe" % (T1, T0)); a.I("s_lshl_b32 s%d, s%d, 1" % (T1, T1))
    a.I("s_add_u32 s%d, s%d, s%d" % (T2, P_D, T1)); a.I("s_addc_u32 s%d, s%d, 0" % (T3, P_D+1))
    a.I("s_load_dword s%d, s[%d:%d], 0" % (S_CB, T2, T3))

def b_q_dma(a):
    srd(a, R1, P_Q, SZ)
    a.I("s_lshl_b32 s%d, s%d, 8" % (T0, S_WAVE))
    a.I("v_add_u32 v7, s%d, v10" % T0)
    a.I("v_mul_u32_u24 v7, 1280, v7")
    a.I("s_lshl_b32 s%d, s%d, 4" % (T1, S_B))
    a.I("v_add_u32 v7, s%d, v7" % T1)
    a.I("s_lshl_b32 s%d, s%d, 12" % (T0, S_WAVE))
    a.I("s_mov_b32 s%d, 0" % T1)
    for i in range(4):
        a.I("s_add_u32 m0, s%d, %d" % (T0, L_Q + 1024*i))
        a.I("s_nop 0")
        a.I("buffer_load_dwordx4 v7, s[%d:%d], s%d offen lds" % (R1, R1+3, T1))
        if i < 3: a.I("s_add_u32 s%d, s%d, 81920" % (T1, T1))

def b1_compute(a):
    KR = lambda i: 16 + 4*i; VR = lambda j: 44 + 4*j; WR = 60
    Pq = 80; U = 88; OUTR = 96
    a.I("s_mov_b32 s%d, 0x05040100" % T0); a.I("s_mov_b32 s%d, 0x07060302" % T1)
    for c in range(8):
        rc, hc = c >> 1, c & 1
        sel = T0 if hc == 0 else T1
        for i in range(1, 7):
            a.I("v_perm_b32 v%d, v%d, v%d, s%d" % (Pq+i-1, KR(i-1)+rc, KR(i)+rc, sel))
        for j in range(4):
            a.I("v_dot2_f32_bf16 v%d, v%d, v%d, 0" % (U+j, Pq+(j+3-2)-1, WR+2*c+1))
        for j in range(4):
            a.I("v_dot2_f32_bf16 v%d, v%d, v%d, v%d" % (U+j, Pq+(j+3)-1, WR+2*c, U+j))
        for j in range(4):
            if hc == 0: a.I("v_lshlrev_b32 v%d, 16, v%d" % (92+j, VR(j)+rc))
            else: a.I("v_and_b32 v%d, 0xffff0000, v%d" % (92+j, VR(j)+rc))
        for j in range(4): a.I("v_mul_f32 v%d, v%d, v%d" % (U+j, U+j, 92+j))
        a.I("v_cvt_pk_bf16_f32 v%d, v%d, v%d" % (OUTR+2*c, U+3, U+2))
        a.I("v_cvt_pk_bf16_f32 v%d, v%d, v%d" % (OUTR+2*c+1, U+1, U))
    a.I("s_lshr_b32 s%d, s%d, 2" % (T2, S_WAVE)); a.I("s_lshl_b32 s%d, s%d, 14" % (T2, T2)); a.I("s_add_u32 s%d, s%d, %d" % (T2, T2, L_T))
    a.I("v_sub_u32 v14, 31, v12"); a.I("v_lshlrev_b32 v15, 1, v13"); a.I("v_xor_b32 v14, v14, v15")
    a.I("v_lshlrev_b32 v14, 3, v14"); a.I("v_lshl_add_u32 v14, v13, 11, v14"); a.I("v_add_u32 v14, s%d, v14" % T2)
    for c in range(8): a.I("ds_write_b64 v14, %s offset:%d" % (v(OUTR+2*c,2), 256*c))
    a.I("v_lshrrev_b32 v1, 4, v11")
    a.I("v_and_b32 v2, 15, v11")
    a.I("v_lshrrev_b32 v3, 7, v11")
    for i in range(4):
        a.I("v_add_u32 v4, %d, v3" % (2*i)); a.I("v_xor_b32 v4, v4, v2"); a.I("v_lshlrev_b32 v4, 4, v4")
        a.I("v_lshl_add_u32 v4, v1, 8, v4"); a.I("v_add_u32 v%d, s%d, v4" % (80+i, T2))
    srd(a, R2, P_WS, SZ, WS_UT)
    a.I("s_lshl_b32 s%d, s%d, 18" % (T0, S_RB2))
    a.I("s_lshl_b32 s%d, s%d, 8" % (T1, S_RB)); a.I("s_sub_u32 s%d, s%d, s%d" % (T0, T0, T1)); a.I("s_add_u32 s%d, s%d, 3840" % (T0, T0))
    a.I("v_lshlrev_b32 v5, 12, v1"); a.I("v_lshl_add_u32 v5, v2, 4, v5"); a.I("v_add_u32 v5, s%d, v5" % T0)
    a.I("s_waitcnt lgkmcnt(0)")
    a.I("s_barrier")
    for i in range(4): a.I("ds_read_b128 %s, v%d offset:%d" % (v(96+4*i,4), 80+i, 4096*i))
    a.I("s_mov_b32 s%d, 0" % T1)
    for i in range(4):
        a.I("s_waitcnt lgkmcnt(%d)" % (3-i))
        a.I("buffer_store_dwordx4 %s, v5, s[%d:%d], s%d offen%s" % (v(96+4*i,4), R2, R2+3, T1, SC1))
        if i < 3: a.I("s_add_u32 s%d, s%d, 65536" % (T1, T1))

def b_h_stage(a):
    a.I("s_mul_i32 s%d, s%d, %d" % (T0, S_WAVE, H_SZ))
    a.I("v_lshlrev_b32 v6, 4, v10"); a.I("v_add_u32 v6, s%d, v6" % T0)
    a.I("v_readfirstlane_b32 s%d, v128" % T1)
    for i in range(16): a.I("v_alignbit_b32 v%d, v%d, v%d, 16" % (144+i, 144+i, 128+i))
    for i in range(4):
        a.I("ds_write_b128 v6, %s offset:%d" % (v(128+4*i,4), L_H + 32 + 1024*i))
        a.I("ds_write_b128 v6, %s offset:%d" % (v(144+4*i,4), L_H + 4160 + 32 + 1024*i))
    a.I("s_lshl_b32 s%d, s%d, 16" % (T1, T1))
    a.I("v_lshlrev_b32 v7, 2, v10"); a.I("v_add_u32 v7, s%d, v7" % T0)
    a.I("v_mov_b32 v8, 0"); a.I("v_mov_b32 v9, s%d" % T1)
    a.I("v_cmp_eq_u32 vcc, 7, v10")
    a.I("s_mov_b64 exec, 0xff")
    a.I("s_nop 0")
    a.I("v_cndmask_b32 v9, v8, v9, vcc")
    a.I("ds_write_b32 v7, v8 offset:%d" % L_H)
    a.I("ds_write_b32 v7, v9 offset:%d" % (L_H + 4160))
    a.I("s_mov_b64 exec, -1")

def b_u_stage(a):
    srd(a, R2, P_WS, SZ, WS_UT)
    a.I("s_lshl_b32 s%d, s%d, 3" % (T0, S_B)); a.I("s_add_u32 s%d, s%d, s%d" % (T0, T0, S_WAVE)); a.I("s_lshl_b32 s%d, s%d, 12" % (T0, T0))
    a.I("v_lshlrev_b32 v6, 4, v10"); a.I("v_add_u32 v7, s%d, v6" % T0)
    for i in range(4): a.I("buffer_load_dwordx4 %s, v7, s[%d:%d], 0 offen offset:%d%s" % (v(128+4*i,4), R2, R2+3, 1024*i, SC1))
    a.I("s_mul_i32 s%d, s%d, %d" % (T0, S_WAVE, U_SZ)); a.I("s_add_u32 s%d, s%d, %d" % (T0, T0, L_U))
    a.I("v_add_u32 v6, s%d, v6" % T0)
    for i in range(4): a.I("v_mov_b32 v%d, 0" % (144+i))
    a.I("s_mov_b32 exec_hi, 0")
    a.I("ds_write_b128 v6, v[144:147] offset:4096")
    a.I("s_mov_b64 exec, -1")
    for i in range(4):
        a.I("s_waitcnt vmcnt(%d)" % (3-i))
        a.I("ds_write_b128 v6, %s offset:%d" % (v(128+4*i,4), 1024*i))

def b2_main(a):
    AF = lambda S, x: 16 + S*64 + x*4
    BF = lambda S, x: 48 + S*64 + x*4
    AC = lambda t: 144 + 4*t
    VA = 1; VB = 5
    a.I("v_and_b32 v11, 15, v10"); a.I("v_lshrrev_b32 v12, 4, v10")
    a.I("v_and_b32 v13, 1, v11")
    a.I("v_lshlrev_b32 v14, 1, v11")
    a.I("v_cmp_eq_u32 vcc, 1, v13")
    a.I("v_add_u32 v15, 2, v14"); a.I("v_add_u32 v14, 4160, v14")
    a.I("v_cndmask_b32 v14, v14, v15, vcc")
    a.I("v_lshl_add_u32 v14, v12, 4, v14")
    a.I("s_mul_i32 s%d, s%d, %d" % (T0, S_WAVE, H_SZ))
    a.I("v_add_u32 v%d, s%d, v14" % (VA, T0))
    for p in range(1, 4): a.I("v_add_u32 v%d, %d, v%d" % (VA+p, 1024*p, VA))
    a.I("s_mul_i32 s%d, s%d, %d" % (T0, S_WAVE, U_SZ)); a.I("s_add_u32 s%d, s%d, %d" % (T0, T0, L_U + 480))
    a.I("v_lshlrev_b32 v14, 5, v11"); a.I("v_lshlrev_b32 v15, 4, v12"); a.I("v_sub_u32 v14, v15, v14")
    a.I("v_add_u32 v%d, s%d, v14" % (VB, T0))
    def reads(S, b):
        r = []
        for x in range(8):
            o = (x & 1)*128 + 16*b
            r.append("ds_read_b128 %s, v%d offset:%d" % (v(BF(S,x),4), VB, 512*(7-x) + 64*b))
            r.append("ds_read2_b32 %s, v%d offset0:%d offset1:%d" % (v(AF(S,x),2), VA + (x>>1), o, o+1))
            r.append("ds_read2_b32 %s, v%d offset0:%d offset1:%d" % (v(AF(S,x)+2,2), VA + (x>>1), o+2, o+3))
        return r
    for r in reads(0, 0): a.I(r)
    for b in range(8):
        S = b & 1
        a.I("s_waitcnt lgkmcnt(0)")
        ms = []
        for aa in range(8):
            for t in range(aa, 8):
                c = "0" if (b == 0 and aa == 0) else v(AC(t),4)
                ms.append("v_mfma_f32_16x16x32_bf16 %s, %s, %s, %s" % (v(AC(t),4), v(AF(S,aa),4), v(BF(S,t-aa),4), c))
        interleave(a, ms, reads(1-S, b+1) if b < 7 else [])

def b2_epilogue(a):
    AC = lambda t: 144 + 4*t
    a.I("s_mul_i32 s%d, s%d, %d" % (T0, S_WAVE, U_SZ)); a.I("s_add_u32 s%d, s%d, %d" % (T0, T0, L_U + 504))
    a.I("v_lshlrev_b32 v14, 5, v11"); a.I("v_lshl_add_u32 v14, v12, 3, v14"); a.I("v_sub_u32 v14, s%d, v14" % T0)
    for t in range(8): a.I("ds_read_b64 %s, v14 offset:%d" % (v(16+2*t,2), 512*(7-t)))
    a.I("s_and_b32 s%d, s%d, 1" % (T0, S_WAVE))
    a.I("s_cmp_eq_u32 s%d, 0" % T0)
    a.I("s_cbranch_scc1 B_DLO")
    a.I("s_and_b32 s%d, s%d, 0xffff0000" % (S_CB, S_CB))
    a.I("s_branch B_DD")
    a.L("B_DLO")
    a.I("s_lshl_b32 s%d, s%d, 16" % (S_CB, S_CB))
    a.L("B_DD")
    a.I("v_lshl_add_u32 v13, v11, 2, v12"); a.I("v_lshrrev_b32 v15, 2, v11"); a.I("v_xor_b32 v13, v13, v15")
    a.I("s_mul_i32 s%d, s%d, %d" % (T0, S_WAVE, Y_P))
    a.I("v_lshlrev_b32 v13, 3, v13"); a.I("v_add_u32 v13, s%d, v13" % T0)
    a.I("s_barrier")
    a.I("s_waitcnt lgkmcnt(0)")
    for t in range(8):
        d0, d1 = 16+2*t, 16+2*t+1
        a.I("v_and_b32 v32, 0xffff0000, v%d" % d1); a.I("v_lshlrev_b32 v33, 16, v%d" % d1)
        a.I("v_and_b32 v34, 0xffff0000, v%d" % d0); a.I("v_lshlrev_b32 v35, 16, v%d" % d0)
        for r in range(4): a.I("v_fma_f32 v%d, v%d, s%d, v%d" % (32+r, 32+r, S_CB, AC(t)+r))
        a.I("v_cvt_pk_bf16_f32 v%d, v32, v33" % (40+2*t)); a.I("v_cvt_pk_bf16_f32 v%d, v34, v35" % (40+2*t+1))
        a.I("ds_write_b64 v13, %s offset:%d" % (v(40+2*t,2), L_Y + 512*t))
    a.I("v_bfe_u32 v1, v10, 2, 2"); a.I("v_mul_u32_u24 v1, %d, v1" % Y_P)
    a.I("s_lshl_b32 s%d, s%d, 9" % (T0, S_WAVE))
    a.I("v_lshl_add_u32 v1, v12, 5, v1"); a.I("v_add_u32 v1, s%d, v1" % T0)
    a.I("v_and_b32 v2, 3, v10")
    for it in range(4):
        a.I("v_xor_b32 v3, %d, v2" % it); a.I("v_lshl_add_u32 v%d, v3, 3, v1" % (4+it))
    a.I("s_lshl_b32 s%d, s%d, 12" % (T0, S_WAVE)); a.I("s_add_u32 s%d, s%d, %d" % (T0, T0, L_Q))
    a.I("v_lshlrev_b32 v8, 4, v10"); a.I("v_add_u32 v8, s%d, v8" % T0)
    srd(a, R3, P_OUT, 2048*2560)
    a.I("s_lshl_b32 s%d, s%d, 8" % (T0, S_WAVE)); a.I("v_add_u32 v9, s%d, v10" % T0)
    a.I("v_mul_u32_u24 v9, 2560, v9"); a.I("s_lshl_b32 s%d, s%d, 4" % (T0, S_B)); a.I("s_add_u32 s%d, s%d, 1280" % (T0, T0))
    a.I("v_add_u32 v9, s%d, v9" % T0)
    a.I("s_waitcnt vmcnt(0) lgkmcnt(0)")
    a.I("s_barrier")
    for it in range(4):
        d = 64 + 8*it
        a.I("ds_read_b64_tr_b16 %s, v%d offset:%d" % (v(d,2), 4+it, L_Y + 128*it))
        a.I("ds_read_b64_tr_b16 %s, v%d offset:%d" % (v(d+2,2), 4+it, L_Y + 128*it + 4*Y_P))
        a.I("ds_read_b128 %s, v8 offset:%d" % (v(d+4,4), 1024*it))
    a.I("s_mov_b32 s%d, 0" % T1)
    for it in range(4):
        d = 64 + 8*it
        a.I("s_waitcnt lgkmcnt(%d)" % (9 - 3*it))
        for i in range(4):
            a.I("v_lshlrev_b32 v32, 16, v%d" % (d+i)); a.I("v_and_b32 v33, 0xffff0000, v%d" % (d+i))
            a.I("v_lshlrev_b32 v34, 16, v%d" % (d+4+i)); a.I("v_and_b32 v35, 0xffff0000, v%d" % (d+4+i))
            a.I("v_mul_f32 v32, v32, v34"); a.I("v_mul_f32 v33, v33, v35")
            a.I("v_cvt_pk_bf16_f32 v%d, v32, v33" % (100+4*it+i))
        a.I("buffer_store_dwordx4 %s, v9, s[%d:%d], s%d offen" % (v(100+4*it,4), R3, R3+3, T1))
        if it < 3: a.I("s_add_u32 s%d, s%d, %d" % (T1, T1, 64*2560))

def flag_srd(a): srd(a, R4, P_WS, 256*128, WS_FLAG)

DBGT = int(os.environ.get("DBGT", "0"))
def dbg_time_start(a):
    if DBGT:
        a.I("s_memtime s[92:93]"); a.I("s_memrealtime s[94:95]")
def dbg_time_end(a):
    if not DBGT: return
    lab = "DBGT_%d" % len(a.lines)
    a.I("s_waitcnt vmcnt(0)")
    a.I("s_memtime s[96:97]"); a.I("s_memrealtime s[98:99]"); a.I("s_waitcnt lgkmcnt(0)")
    a.I("s_cmp_eq_u32 s%d, 0" % S_WAVE); a.I("s_cbranch_scc0 %s" % lab)
    a.I("s_cmp_eq_u32 s2, 0"); a.I("s_cselect_b32 s%d, 0, -1" % T0)
    a.I("s_cmp_eq_u32 s2, 255"); a.I("s_cselect_b32 s%d, 8, s%d" % (T0, T0))
    a.I("s_cmp_eq_u32 s2, 100"); a.I("s_cselect_b32 s%d, 16, s%d" % (T0, T0))
    a.I("s_cmp_eq_u32 s%d, -1" % T0); a.I("s_cbranch_scc1 %s" % lab)
    a.I("s_sub_u32 s96, s96, s92"); a.I("s_sub_u32 s98, s98, s94")
    srd(a, R4, P_DBG, 256)
    a.I("s_mov_b64 exec, 1"); a.I("v_mov_b32 v1, s%d" % T0); a.I("v_mov_b32 v2, s96"); a.I("v_mov_b32 v3, s98")
    a.I("buffer_store_dwordx2 v[2:3], v1, s[%d:%d], 0 offen" % (R4, R4+3))
    a.L(lab)

def end(a, phase, n=8, fused=False):
    dbg_time_end(a)
    if PROF:
        if fused:
            a.I("s_waitcnt vmcnt(0)"); stamp(a, 10); rstamp(a, 7); stamp_flush(a, 11, phase)
        else:
            a.I("s_waitcnt vmcnt(0)"); stamp(a, 6); rstamp(a, 7); stamp_flush(a, n, phase)
    a.I("s_endpgm")

def gen_phase1(a, tag, fused):
    pass

def build():
    a = Asm()
    LDS = max(NSLOT*SLOT, L_BEND)
    if SPLIT:
        kernel_begin(a, "phase1_kernel")
        prologue(a, "1")
        a.I("s_cmp_ge_u32 s%d, 4" % S_WAVE); a.I("s_cbranch_scc1 A_LOADER1")
        a_compute(a, "1"); a_attention(a, "1"); end(a, 0)
        a.L("A_LOADER1"); a_loader(a, "1"); a.I("s_barrier"); end(a, 0)
        a.L("ROLE_B_1"); b_ids(a); b1_loads(a); a.I("s_waitcnt vmcnt(0)"); stamp(a, 2); b1_compute(a); stamp(a, 3); end(a, 0)
        a.L("END_1"); a.I("s_endpgm")
        kernel_begin(a, "phase2_kernel")
        prologue(a, "2")
        a.I("s_cmp_ge_u32 s%d, 160" % S_IDX); a.I("s_cbranch_scc1 END_2")
        a.I("s_waitcnt lgkmcnt(0)")
        a.I("s_cmp_ge_u32 s%d, 4" % S_WAVE); a.I("s_cbranch_scc1 A_LOADER2")
        a.I("s_barrier"); stamp(a, 2); a2_compute(a); stamp(a, 3); end(a, 1)
        a.L("A_LOADER2"); a2_wo_dma(a); a.I("s_waitcnt vmcnt(0)"); a.I("s_barrier"); end(a, 1)
        a.L("ROLE_B_2"); b_ids(a); a.I("s_waitcnt lgkmcnt(0)")
        b_h_loads(a); b_q_dma(a); a.I("s_waitcnt vmcnt(4)"); b_h_stage(a); b_u_stage(a)
        a.I("s_waitcnt lgkmcnt(0)"); a.I("s_barrier"); stamp(a, 2)
        b2_main(a); stamp(a, 3); b2_epilogue(a); stamp(a, 4); end(a, 1)
        a.L("END_2"); a.I("s_endpgm")
        names = ["phase1_kernel", "phase2_kernel"]
        txt = header([(n, 256, 512, LDS) for n in names])
    else:
        name = NAME + "_kernel"
        kernel_begin(a, name)
        prologue(a, "1")
        a.I("s_cmp_ge_u32 s%d, 4" % S_WAVE); a.I("s_cbranch_scc1 A_LOADER")
        a_compute(a, "1"); a_attention(a, "1")
        a.I("s_waitcnt vmcnt(0)")
        stamp(a, 6)
        a.I("s_barrier")
        a.I("s_cmp_ge_u32 s%d, 160" % S_IDX); a.I("s_cbranch_scc1 A_END")
        a.I("s_barrier")
        stamp(a, 8)
        a2_compute(a)
        stamp(a, 9)
        a.L("A_END")
        end(a, 0, fused=True)
        a.L("A_LOADER")
        a_loader(a, "1")
        a.I("s_cmp_ge_u32 s%d, 160" % S_IDX); a.I("s_cbranch_scc1 AL_NOWO")
        a2_wo_dma(a)
        a.L("AL_NOWO")
        a.I("s_barrier")
        flag_srd(a)
        a.I("s_cmp_eq_u32 s%d, 4" % S_WAVE); a.I("s_cbranch_scc0 AL_NF0")
        load_seed(a)
        a.I("v_lshrrev_b32 v1, 4, v10"); a.I("v_mul_u32_u24 v1, 127, v1")
        a.I("s_lshl_b32 s%d, s%d, 7" % (T0, S_RB2)); a.I("v_add_u32 v1, s%d, v1" % T0)
        a.I("v_mul_u32_u24 v1, 43691, v1"); a.I("v_lshrrev_b32 v1, 23, v1")
        a.I("v_and_b32 v2, 15, v10"); a.I("v_lshl_add_u32 v1, v1, 4, v2"); a.I("v_lshlrev_b32 v3, 7, v1")
        a.I("s_lshl_b32 s%d, s%d, 4" % (T1, S_RB)); a.I("s_add_u32 s%d, s%d, s%d" % (T1, T1, S_HG))
        a.I("s_waitcnt lgkmcnt(0)")
        make_nonce(a)
        a.L("AL_NF0")
        a.I("s_barrier")
        a.I("s_cmp_eq_u32 s%d, 4" % S_WAVE); a.I("s_cbranch_scc0 AL_NF1")
        flag_store(a, T1)
        stamp(a, 8)
        a.I("s_cmp_ge_u32 s%d, 160" % S_IDX); a.I("s_cbranch_scc1 AL_END")
        a.I("v_mov_b32 v1, v3")
        poll(a, "A", 32)
        stamp(a, 9)
        a.L("AL_NF1")
        a.I("s_cmp_ge_u32 s%d, 160" % S_IDX); a.I("s_cbranch_scc1 AL_END")
        a.I("s_waitcnt vmcnt(0)")
        a.I("s_barrier")
        a.L("AL_END")
        end(a, 0, fused=True)
        a.L("ROLE_B_1"); b_ids(a); b1_loads(a)
        a.I("s_cmp_eq_u32 s%d, 0" % S_WAVE); a.I("s_cbranch_scc0 B_NS")
        load_seed(a)
        a.L("B_NS")
        b_h_loads(a)
        a.I("s_waitcnt vmcnt(8)"); stamp(a, 2)
        b1_compute(a); stamp(a, 3)
        a.I("s_waitcnt vmcnt(4)")
        b_h_stage(a)
        a.I("s_waitcnt vmcnt(0)")
        stamp(a, 4)
        a.I("s_barrier")
        a.I("s_cmp_eq_u32 s%d, 0" % S_WAVE); a.I("s_cbranch_scc0 B_NF")
        a.I("s_waitcnt lgkmcnt(0)")
        a.I("s_mov_b32 s%d, s%d" % (S_SEED, S_NONCE))
        make_nonce(a); flag_srd(a)
        a.I("s_add_u32 s%d, s%d, 176" % (T1, S_B))
        flag_store(a, T1)
        a.I("s_and_b32 s%d, s%d, 0xfffffff8" % (T1, S_B)); a.I("s_add_u32 s%d, s%d, 176" % (T1, T1))
        a.I("v_add_u32 v1, s%d, v10" % T1); a.I("v_lshlrev_b32 v1, 7, v1")
        poll(a, "B", 8)
        a.L("B_NF")
        a.I("s_barrier")
        stamp(a, 5)
        b_u_stage(a); b_q_dma(a)
        a.I("s_waitcnt lgkmcnt(0)"); a.I("s_barrier"); stamp(a, 6)
        b2_main(a); stamp(a, 8); b2_epilogue(a); stamp(a, 9)
        a.I("s_or_b32 s%d, s%d, s%d" % (T0, S_B, S_WAVE)); a.I("s_cmp_eq_u32 s%d, 0" % T0); a.I("s_cbranch_scc0 B_END")
        flag_srd(a)
        for q4 in range(4):
            a.I("v_add_u32 v1, %d, v10" % (64*q4)); a.I("v_lshlrev_b32 v1, 7, v1")
            poll(a, "S%d" % q4, 64)
        srd(a, R3, P_WS, 64, WS_SEED)
        a.I("s_add_u32 s%d, s%d, 1" % (S_SEED, S_SEED))
        a.I("s_mov_b64 exec, 1"); a.I("v_mov_b32 v1, 0"); a.I("v_mov_b32 v2, s%d" % S_SEED)
        a.I("buffer_store_dword v2, v1, s[%d:%d], 0 offen sc1" % (R3, R3+3))
        a.I("s_mov_b64 exec, -1")
        a.L("B_END")
        end(a, 0, fused=True)
        a.L("END_1"); a.I("s_endpgm")
        names = [name]
        txt = "; @launch grid=(256,1,1) block=(512,1,1) lds=%d\n.amdgcn_target \"amdgcn-amd-amdhsa--gfx950\"\n.text\n" % LDS
    txt += a.text() + '.section .rodata,"a"\n' + "".join(descriptor(n, 256, 102 if (PROF or DBGT) else 96) for n in names)
    check_hazards(txt)
    open(os.environ.get("OUT", "../k.s"), "w").write(txt)

if __name__ == "__main__":
    build()
```
